```python
import torch

def _softmax(x, axis=-1):
    return torch.softmax(x, dim=axis)
def _gelu(x):
    return torch.nn.functional.gelu(x, approximate="tanh")
def _silu(x):
    return torch.nn.functional.silu(x)
def _sigmoid(x):
    return torch.sigmoid(x)
def _layernorm(x, axis=-1, eps=1e-5):
    m = x.mean(dim=axis, keepdim=True)
    v = x.var(dim=axis, keepdim=True, unbiased=False)
    return (x - m) / torch.sqrt(v + eps)
def _scatter_add(tgt, idx, src, axis=0):
    return tgt.clone().index_add_(axis, idx, src)
def _segment_sum(src, seg, n):
    out = torch.zeros((n,) + src.shape[1:], dtype=src.dtype)
    return out.index_add_(0, seg, src)
def _pad(x, pw):
    flat = tuple(v for pair in reversed(pw) for v in pair)
    return torch.nn.functional.pad(x, flat)

kernel_name = 'sequential_preLN__softmax_full_mha__glu_gated_glu__prompt'

def setup_inputs():

    _w = (lambda a: (lambda t: t.to(torch.bfloat16) if t.is_floating_point() else t)(torch.as_tensor(a)))
    def _A_setup():
        B, S, D = 1, 2048, 1024
        return {
            "x": _w((lambda *s: torch.randn(*s, dtype=torch.bfloat16) * 0.05)(B, S, D)),
            "wqkv": _w((lambda *s: torch.randn(*s, dtype=torch.bfloat16) * 0.05)(D, 3 * D)),
            "wo": _w((lambda *s: torch.randn(*s, dtype=torch.bfloat16) * 0.05)(D, D)),
        }
    _A_in = _A_setup()

    def _B_setup():
        B, S, D, F = 1, 2048, 1024, 3584
        return {
            "x": _w((lambda *s: torch.randn(*s, dtype=torch.bfloat16) * 0.05)(B, S, D)),
            "w_gate": _w((lambda *s: torch.randn(*s, dtype=torch.bfloat16) * 0.05)(D, F)),
            "w_up": _w((lambda *s: torch.randn(*s, dtype=torch.bfloat16) * 0.05)(D, F)),
            "w_down": _w((lambda *s: torch.randn(*s, dtype=torch.bfloat16) * 0.05)(F, D)),
        }
    _B_in = _B_setup()

    return {
        "A_x": _A_in["x"],
        "A_wqkv": _A_in["wqkv"],
        "A_wo": _A_in["wo"],
        "B_x": _B_in["x"],
        "B_w_gate": _B_in["w_gate"],
        "B_w_up": _B_in["w_up"],
        "B_w_down": _B_in["w_down"],
    }

def reference(A_x, A_wqkv, A_wo, B_x, B_w_gate, B_w_up, B_w_down):
    def _A_ref(x, wqkv, wo):
        B, S, D = x.shape
        H = 32; Dh = D // H
        qkv = (lambda x, *d: x.permute(*d))((x @ wqkv).reshape(B, S, 3, H, Dh), 2, 0, 3, 1, 4)
        q, k, v = qkv[0], qkv[1], qkv[2]
        scale = Dh ** -0.5
        scores = torch.einsum("bhqd,bhkd->bhqk", q, k) * scale
        p = _softmax(scores, axis=-1)
        o = torch.einsum("bhqk,bhkd->bhqd", p, v)
        return (lambda x, *d: x.permute(*d))(o, 0, 2, 1, 3).reshape(B, S, D) @ wo

    def _B_ref(x, w_gate, w_up, w_down):
        g = torch.einsum("bsd,df->bsf", x, w_gate)
        u = torch.einsum("bsd,df->bsf", x, w_up)
        h = _sigmoid(g) * u
        return torch.einsum("bsf,fd->bsd", h, w_down)

    x = A_x
    h = x + _A_ref(_layernorm(x, axis=-1), A_wqkv, A_wo)
    h2 = h + _B_ref(_layernorm(h, axis=-1), B_w_gate, B_w_up, B_w_down)
    return h2
```

```python
S, D, H, DH, F = 2048, 1024, 32, 32, 3584
MB = 1 << 20
WS_XN = 0
WS_Q = 4 * MB
WS_KV = 8 * MB
WS_O = 16 * MB
WS_H = 20 * MB
WS_ACT = 24 * MB
WS_ST = 40 * MB
WS_CS = 41 * MB
WS_END = 42 * MB
KA_X, KA_WQKV, KA_WO, KA_BX, KA_WG, KA_WU, KA_WD, KA_OUT, KA_DBG, KA_WS = [8 * i for i in range(10)]

class K:
    def __init__(self, name, grid, block, lds, vgpr, agpr=0, sgpr=96):
        self.name, self.grid, self.block, self.lds = name, grid, block, lds
        self.vgpr, self.agpr, self.sgpr = vgpr, agpr, sgpr
        self.L = []
    def __call__(self, s):
        for line in s.strip("\n").split("\n"):
            line = line.strip()
            if line: self.L.append(line)
    def ext(self, lst):
        for x in lst: self(x)
    def lab(self, n): return f"{self.name}_{n}"
    def label(self, n): self.L.append(f"{self.name}_{n}:")
    def text(self):
        body = "\n".join(("" if l.endswith(":") else "    ") + l for l in self.L)
        return f".globl {self.name}\n.p2align 8\n.type {self.name},@function\n{self.name}:\n{body}\n    s_endpgm\n"
    def desc(self):
        acc = (self.vgpr + 3) // 4 * 4
        nfv = acc + self.agpr if self.agpr else self.vgpr
        return f""".p2align 6
.amdhsa_kernel {self.name}
  .amdhsa_next_free_vgpr {nfv}
  .amdhsa_next_free_sgpr {self.sgpr}
  .amdhsa_accum_offset {acc}
  .amdhsa_group_segment_fixed_size 0
  .amdhsa_kernarg_size 80
  .amdhsa_user_sgpr_count 2
  .amdhsa_user_sgpr_kernarg_segment_ptr 1
  .amdhsa_system_sgpr_workgroup_id_x 1
.end_amdhsa_kernel
"""
    def srd(self, d, ptr, off, nbytes):
        if off == 0:
            self(f"s_mov_b32 s{d}, s{ptr}\ns_and_b32 s{d+1}, s{ptr+1}, 0xffff")
        elif off > 0:
            self(f"s_add_u32 s{d}, s{ptr}, {off}\ns_addc_u32 s{d+1}, s{ptr+1}, 0\ns_and_b32 s{d+1}, s{d+1}, 0xffff")
        else:
            self(f"s_sub_u32 s{d}, s{ptr}, {-off}\ns_subb_u32 s{d+1}, s{ptr+1}, 0\ns_and_b32 s{d+1}, s{d+1}, 0xffff")
        self(f"s_mov_b32 s{d+2}, {nbytes}\ns_mov_b32 s{d+3}, 0x20000")

def vr(a, n=1): return f"v{a}" if n == 1 else f"v[{a}:{a+n-1}]"
def ar(a, n=1): return f"a{a}" if n == 1 else f"a[{a}:{a+n-1}]"
def sr(a, n=1): return f"s{a}" if n == 1 else f"s[{a}:{a+n-1}]"

def interleave(main, fill, span=1.0, start=0):
    n = len(main); out = []
    last = max(start + 1, int(n * span))
    slots = [[] for _ in range(n)]
    m = len(fill)
    for j, f in enumerate(fill):
        p = start + (j * (last - start)) // max(1, m)
        slots[min(p, n - 1)].append(f)
    for i in range(n):
        out.append(main[i]); out += slots[i]
    return out

def merge(*lists):
    items = []
    for li, l in enumerate(lists):
        for j, x in enumerate(l):
            items.append(((j + 0.5) / len(l), li, j, x))
    items.sort(key=lambda t: (t[0], t[1], t[2]))
    return [t[3] for t in items]

HEADER = open("sequential_preLN__softmax_full_mha__glu_gated_glu__prompt.s.ref").read().split("; Override launch")[0]
def write_file(path, launches):
    seen = []
    with open(path, "w") as f:
        f.write(HEADER)
        for k in launches:
            f.write(f"; @launch kernel={k.name} grid=({k.grid},1,1) block=({k.block},1,1) lds={k.lds}\n")
        f.write('.amdgcn_target "amdgcn-amd-amdhsa--gfx950"\n.text\n')
        for k in launches:
            if k not in seen:
                seen.append(k); f.write(k.text())
        f.write('.section .rodata,"a"\n')
        for k in seen: f.write(k.desc())
```

```python
from common import *
BIAS = 4096

class G:
    pass

def gemm_main(k, c):
    KGS = c.BK // 32; KG = c.K // 32
    PH = KGS // c.SUB
    SPL = 2 // PH
    nst = c.K // c.BK
    Wreg = 16384
    L = 4 + c.LW
    acc = (lambda j, i: ar(4 * (j * c.MT + i), 4)) if c.acc_agpr else (lambda j, i: vr(c.vacc + 4 * (j * c.MT + i), 4))
    XF = lambda st, kk, i: c.vfx + ((st * c.SUB + kk) * c.MT + i) * 4
    WF = lambda st, kk, j: c.vfw + ((st * c.SUB + kk) * c.NT + j) * 4
    vAd, vAr, vWr, vWd = 4, 5, 6, 8
    k(f"""
    v_and_b32 v1, 63, v0
    v_lshrrev_b32 v2, 6, v0
    s_and_b32 s38, s2, 7
    v_readfirstlane_b32 s42, v2
    s_lshr_b32 s39, s2, 3
    v_lshrrev_b32 v2, 4, v1
    v_and_b32 v3, 15, v1
    """)
    lg = lambda x: x.bit_length() - 1
    k(f"""
    s_and_b32 s40, s38, {c.xm-1}
    s_lshl_b32 s40, s40, {lg(c.tm)}
    s_and_b32 s45, s39, {c.tm-1}
    s_add_u32 s40, s40, s45
    s_lshr_b32 s41, s38, {lg(c.xm)}
    s_lshl_b32 s41, s41, {lg(32//c.tm)}
    s_lshr_b32 s45, s39, {lg(c.tm)}
    s_add_u32 s41, s41, s45
    s_lshr_b32 s43, s42, {lg(c.WN)}
    s_and_b32 s44, s42, {c.WN-1}
    v_lshlrev_b32 v{vAd}, 4, v1
    """)
    k(f"""
    s_lshr_b32 s45, s42, {lg(KGS)}
    s_lshl_b32 s46, s40, {lg(c.TM//64)}
    s_add_u32 s45, s45, s46
    s_mul_i32 s45, s45, {KG}
    s_and_b32 s46, s42, {KGS-1}
    s_add_u32 s45, s45, s46
    s_lshl_b32 s16, s45, 12
    s_lshl_b32 s18, s42, 12
    """)
    if c.TM == 64: wpart = f"s_lshl_b32 s45, s43, {10 + lg(c.MT)}"
    else: wpart = f"s_lshl_b32 s45, s43, {12 + lg(KGS)}"
    k(f"{wpart}\nv_add_u32 v{vAr}, s45, v{vAd}")
    if c.wmode == "cb":
        RGW = c.BK // 32
        k(f"""
        v_lshrrev_b32 v20, 3, v1
        v_and_b32 v21, 7, v1
        v_and_b32 v22, 6, v20
        v_xor_b32 v21, v21, v22
        v_lshlrev_b32 v21, 4, v21
        v_mul_u32_u24 v20, {c.wstride}, v20
        v_add_u32 v20, v20, v21
        """)
        for i in range(c.LW):
            rg, cb = divmod(i, c.NCB)
            k(f"v_add_u32 v{vWd+i}, {BIAS + rg*8*c.wstride + cb*c.cbstride - (i%4)*1024}, v20")
        k(f"""
        s_mul_i32 s17, s42, {RGW*8*c.wstride}
        s_mul_i32 s45, s41, {c.colstep}
        s_add_u32 s17, s17, s45
        s_mul_i32 s19, s42, {c.LW*1024}
        s_add_u32 s19, s19, {Wreg}
        """)
        k(f"""
        v_lshrrev_b32 v20, 2, v1
        v_and_b32 v20, 7, v20
        v_lshrrev_b32 v21, 1, v20
        s_lshl_b32 s45, s44, 1
        v_xor_b32 v21, s45, v21
        v_lshlrev_b32 v21, 5, v21
        v_lshlrev_b32 v20, 7, v20
        v_lshrrev_b32 v22, 5, v1
        v_mul_u32_u24 v22, {c.NCB*1024}, v22
        v_add_u32 v20, v20, v22
        v_and_b32 v22, 3, v1
        v_lshl_add_u32 v20, v22, 3, v20
        v_add_u32 v20, {Wreg}, v20
        v_add_u32 v{vWr}, v20, v21
        v_xor_b32 v21, 32, v21
        v_add_u32 v{vWr+1}, v20, v21
        """)
        def wread(st, kk_s, kk, j, half):
            cb, uu = divmod(j, 2)
            return f"ds_read_b64_tr_b16 {vr(WF(st,kk,j)+2*half,2)}, v{vWr+uu} offset:{((4*kk_s+2*half)*c.NCB+cb)*1024}"
        nWr = 2
    else:
        k(f"""
        s_and_b32 s45, s42, 1
        s_mul_i32 s45, s45, 192
        v_add_u32 v20, s45, v1
        s_mov_b32 s46, 0x12492493
        """)
        for i in range(4):
            k(f"""
            v_add_u32 v21, {64*i}, v20
            v_mul_hi_u32 v22, v21, s46
            v_mul_u32_u24 v23, 14, v22
            v_sub_u32 v21, v21, v23
            v_mul_u32_u24 v22, {c.wstride}, v22
            v_lshl_add_u32 v22, v21, 4, v22
            v_add_u32 v{vWd+i}, {BIAS - i*1024}, v22
            """)
        k(f"""
        s_mul_i32 s17, s41, 224
        s_lshr_b32 s46, s42, 1
        s_mul_i32 s46, s46, {7168+16}
        s_lshl_b32 s45, s45, 4
        s_add_u32 s19, s45, s46
        s_add_u32 s19, s19, {Wreg}
        v_lshrrev_b32 v20, 2, v1
        v_mul_u32_u24 v20, 224, v20
        v_and_b32 v21, 1, v1
        v_lshl_add_u32 v20, v21, 3, v20
        v_and_b32 v21, 2, v1
        v_mul_u32_u24 v21, {(7168+16)//2}, v21
        v_add_u32 v20, v20, v21
        v_add_u32 v{vWr}, {Wreg}, v20
        """)
        def wread(st, kk_s, kk, j, half):
            return f"ds_read_b64_tr_b16 {vr(WF(st,kk,j)+2*half,2)}, v{vWr} offset:{half*16*224 + j*16}"
        nWr = 1
    def xread(st, kk_s, kk, i):
        return f"ds_read_b128 {vr(XF(st,kk,i),4)}, v{vAr} offset:{(kk_s*4+i)*1024}"
    def reads(st, ph):
        xs, ws = [], []
        for kk in range(c.SUB):
            kk_s = ph * c.SUB + kk
            xs += [xread(st, kk_s, kk, i) for i in range(c.MT)]
            for j in range(c.NT): ws += [wread(st, kk_s, kk, j, 0), wread(st, kk_s, kk, j, 1)]
        return xs + ws
    def dma():
        o = ["s_mov_b32 m0, s18", "s_add_u32 s18, s18, s22"]
        o += [f"buffer_load_dwordx4 v{vAd}, s[4:7], s16 offen offset:{i*1024} lds" for i in range(4)]
        o += [f"s_add_u32 s16, s16, {KGS*4096}"]
        for i in range(c.LW):
            if i % 4 == 0:
                o += ["s_mov_b32 m0, s19" if i == 0 else f"s_add_u32 m0, s19, {i*1024}"]
                o += ["s_nop 0"] if i else [f"s_add_u32 s23, s23, 1"]
            o += [f"buffer_load_dwordx4 v{vWd+i}, s[8:11], s17 offen offset:{(i%4)*1024} lds"]
        o += [f"s_add_u32 s17, s17, {c.BK*c.wstride}", "s_add_u32 s19, s19, s22"]
        return o
    def dma_pre():
        return [f"s_add_u32 s24, s24, 1", f"s_cmp_eq_u32 s24, {c.NS}", f"s_cselect_b32 s22, s27, s28", f"s_cselect_b32 s24, 0, s24",
                f"s_cmp_lt_u32 s23, {nst}", f"s_cselect_b32 s6, s29, 0", f"s_cselect_b32 s10, s30, 0"]
    k(f"""
    s_mov_b32 s23, 0
    s_mov_b32 s24, 0
    s_mov_b32 s25, 0
    s_mov_b32 s27, {-(c.NS-1)*c.slot & 0xffffffff}
    s_mov_b32 s28, {c.slot}
    s_waitcnt lgkmcnt(0)
    """)
    c.srds(k)
    k("s_mov_b32 s29, s6\ns_mov_b32 s30, s10")
    full = dma_pre() + dma()
    if PH == 2:
        marks = [i for i, x in enumerate(full) if "m0, s19" in x] + [len(full)]
        cut = marks[c.cutg]
    else:
        cut = len(full)
    part1, part2 = full[:cut], full[cut:]
    L2 = sum("buffer_load" in x for x in part2)
    for s in range(c.NS):
        k.ext(full if s < c.NS - 1 else part1)
        if s == 0: c.pre(k)
    for j in range(c.NT):
        for i in range(c.MT):
            for r in range(4):
                k(f"v_accvgpr_write_b32 a{4*(j*c.MT+i)+r}, 0" if c.acc_agpr else f"v_mov_b32 v{c.vacc+4*(j*c.MT+i)+r}, 0")
    k(f"s_waitcnt vmcnt({(c.NS-1)*L - L2 + c.pre_vm})\ns_barrier")
    k.ext(reads(0, 0))
    k(f"s_mov_b32 s20, {nst // SPL}\ns_waitcnt lgkmcnt(0)")
    k(".p2align 6") if False else None
    k.label("loop")
    for p in range(2):
        ph = p % PH
        lastph = ph == PH - 1
        mf = []
        for kk in range(c.SUB):
            for j in range(c.NT):
                for i in range(c.MT):
                    a, b = vr(WF(p, kk, j), 4), vr(XF(p, kk, i), 4)
                    if c.swap(j): a, b = b, a
                    mf.append(f"v_mfma_f32_16x16x32_bf16 {acc(j,i)}, {a}, {b}, {acc(j,i)}")
        rd = reads(1 - p, (ph + 1) % PH)
        if lastph:
            k(f"s_waitcnt vmcnt({(c.NS-2)*L})")
            k(f"s_add_u32 s25, s25, 1\ns_cmp_eq_u32 s25, {c.NS}\ns_cselect_b32 s26, s27, s28\ns_cselect_b32 s25, 0, s25")
            k("s_barrier")
            upd = [f"v_add_u32 v{vAr}, s26, v{vAr}"] + [f"v_add_u32 v{vWr+u}, s26, v{vWr+u}" for u in range(nWr)]
            fill = upd + merge(rd, part1)
        else:
            fill = merge(rd, part2) if part2 else rd
        k.ext(interleave(mf, fill, span=c.span))
        if p == 1:
            k("s_sub_u32 s20, s20, 1\ns_cmp_lg_u32 s20, 0")
        k("s_waitcnt lgkmcnt(0)")
    k(f"s_cbranch_scc1 {k.lab('loop')}")
    k("s_nop 7\ns_nop 7")

def cvt_pair(k, dst, a, b):
    k(f"v_cvt_pk_bf16_f32 v{dst}, v{a}, v{a+1}\nv_cvt_pk_bf16_f32 v{dst+1}, v{a+2}, v{a+3}")
    k(f"v_cvt_pk_bf16_f32 v{dst+2}, v{b}, v{b+1}\nv_cvt_pk_bf16_f32 v{dst+3}, v{b+2}, v{b+3}")

def head(k, n):
    k(f"s_cmp_ge_u32 s2, {n}\ns_cbranch_scc1 {k.lab('end')}")

def gen_k1():
    c = G()
    c.K, c.TM, c.BK, c.NS, c.SUB, c.MT, c.NT, c.WN = 1024, 128, 64, 4, 1, 4, 6, 2
    c.wmode, c.NCB, c.LW, c.wstride, c.cbstride, c.colstep = "cb", 3, 6, 6144, 2048, 128
    c.slot, c.xm, c.tm = 40960, 2, 8
    c.acc_agpr, c.vacc, c.vfx, c.vfw = False, 32, 128, 160
    c.swap = lambda j: j >= 4
    c.span, c.cutg, c.pre_vm = 0.8, 0, 0
    k = K("k1_kernel", 256, 256, c.slot * c.NS, vgpr=208)
    head(k, 256)
    k(f"s_load_dwordx2 s[32:33], s[0:1], {KA_WS}\ns_load_dwordx2 s[34:35], s[0:1], {KA_WQKV}")
    def srds(k):
        k.srd(4, 32, WS_XN, S * D * 2)
        k.srd(8, 34, -BIAS, D * 3 * D * 2 + BIAS)
        k.srd(12, 32, WS_Q, 12 * MB)
    c.srds = srds
    c.pre = lambda k: None
    gemm_main(k, c)
    A = lambda j, i: c.vacc + 4 * (j * c.MT + i)
    k(f"""
    s_lshl_b32 s45, s41, 1
    s_add_u32 s45, s45, s44
    s_lshl_b32 s46, s40, 2
    s_lshl_b32 s47, s43, 1
    s_add_u32 s46, s46, s47
    s_lshl_b32 s45, s45, 6
    s_add_u32 s45, s45, s46
    s_lshl_b32 s46, s45, 11
    s_lshl_b32 s47, s45, 12
    s_add_u32 s47, s47, {WS_KV - WS_Q}
    s_mov_b32 s48, 0x3e8293ee
    """)
    k("""
    v_lshlrev_b32 v10, 9, v2
    v_lshl_add_u32 v11, v3, 4, v10
    v_and_b32 v12, 7, v3
    v_lshlrev_b32 v12, 4, v12
    v_and_b32 v13, 8, v3
    v_lshl_add_u32 v12, v13, 5, v12
    v_add_u32 v12, v12, v10
    """)
    for i in range(4):
        for r in range(4):
            k(f"v_mul_f32 v{A(0,i)+r}, s48, v{A(0,i)+r}\nv_mul_f32 v{A(1,i)+r}, s48, v{A(1,i)+r}")
        cvt_pair(k, 128 + 4 * i, A(0, i), A(1, i))
        k(f"buffer_store_dwordx4 {vr(128+4*i,4)}, v11, s[12:15], s46 offen offset:{(i//2)*2048 + (i%2)*256}")
    k("s_add_u32 s49, s47, 4096")
    for i in range(4):
        cvt_pair(k, 144 + 4 * i, A(2, i), A(3, i))
        k(f"buffer_store_dwordx4 {vr(144+4*i,4)}, v12, s[12:15], s{47 if i < 2 else 49} offen offset:{(i%2)*128}")
    for jd in range(2):
        for ii in range(2):
            cvt_pair(k, 160 + 4 * (2 * jd + ii), A(4 + jd, 2 * ii), A(4 + jd, 2 * ii + 1))
            k(f"buffer_store_dwordx4 {vr(160+4*(2*jd+ii),4)}, v11, s[12:15], s{47 if ii == 0 else 49} offen offset:{2048 + jd*256}")
    k.label("end")
    return k

def gen_k35(which):
    c = G()
    c.K = 1024 if which == 3 else F
    c.TM, c.BK, c.NS, c.SUB, c.MT, c.NT, c.WN = 64, 128, 3, 2, 2, 4, 2
    c.wmode, c.NCB, c.LW, c.wstride, c.cbstride, c.colstep = "cb", 2, 8, 2048, 128, 256
    c.slot, c.xm, c.tm = 49152, 4, 8
    c.acc_agpr, c.vacc, c.vfx, c.vfw = False, 32, 64, 96
    c.swap = lambda j: False
    c.span, c.cutg = 0.8, 1
    c.pre_vm = 8 if which == 3 else 4
    k = K(f"k{which}_kernel", 256, 256, c.slot * c.NS, vgpr=176)
    head(k, 256)
    k(f"s_load_dwordx2 s[32:33], s[0:1], {KA_WS}\ns_load_dwordx2 s[34:35], s[0:1], {KA_WO if which == 3 else KA_WD}")
    k(f"s_load_dwordx2 s[36:37], s[0:1], {KA_X if which == 3 else KA_OUT}")
    def srds(k):
        k.srd(4, 32, WS_O if which == 3 else WS_ACT, S * c.K * 2)
        k.srd(8, 34, -BIAS, c.K * D * 2 + BIAS)
        k.srd(12, 32, WS_H, S * D * 2)
        k.srd(52, 36, 0, S * D * 2)
        if which == 3: k.srd(56, 32, WS_ST, S * 128)
    c.srds = srds
    R = 160
    def pre(k):
        k(f"""
        s_lshl_b32 s45, s40, 6
        s_lshl_b32 s46, s43, 5
        s_add_u32 s45, s45, s46
        v_add_u32 v17, s45, v3
        v_lshlrev_b32 v16, 11, v17
        s_lshl_b32 s45, s41, 8
        s_lshl_b32 s46, s44, 6
        s_add_u32 s45, s45, s46
        v_lshl_add_u32 v16, v2, 3, v16
        v_add_u32 v16, s45, v16
        s_lshl_b32 s45, s40, 5
        s_lshl_b32 s46, s41, 2
        s_add_u32 s45, s45, s46
        s_add_u32 s45, s45, s44
        s_lshl_b32 s45, s45, 12
        s_lshl_b32 s46, s43, 11
        s_add_u32 s50, s45, s46
        s_add_u32 s51, s50, 8192
        s_mov_b32 s49, 32768
        """)
        for cb in range(2):
            for i in range(2):
                r = R + 4 * (cb * 2 + i)
                if which == 3:
                    so = "s49" if i else "0"
                    k(f"buffer_load_dwordx2 {vr(r,2)}, v16, s[52:55], {so} offen offset:{cb*128}")
                    k(f"buffer_load_dwordx2 {vr(r+2,2)}, v16, s[52:55], {so} offen offset:{cb*128+32}")
                else:
                    k(f"buffer_load_dwordx4 {vr(r,4)}, v4, s[12:15], s{50+cb} offen offset:{i*1024}")
    c.pre = pre
    gemm_main(k, c)
    A = lambda j, i: c.vacc + 4 * (j * c.MT + i)
    k("s_waitcnt vmcnt(0)")
    if which == 3:
        for i in range(2): k(f"v_mov_b32 v{20+2*i}, 0\nv_mov_b32 v{21+2*i}, 0")
    for cb in range(2):
        for i in range(2):
            r = R + 4 * (cb * 2 + i)
            for hf in range(2):
                a = A(2 * cb + hf, i)
                for d in range(2):
                    k(f"v_lshlrev_b32 v18, 16, v{r+2*hf+d}\nv_and_b32 v19, 0xffff0000, v{r+2*hf+d}")
                    k(f"v_add_f32 v{a+2*d}, v{a+2*d}, v18\nv_add_f32 v{a+2*d+1}, v{a+2*d+1}, v19")
            o = 64 + 4 * (cb * 2 + i)
            cvt_pair(k, o, A(2 * cb, i), A(2 * cb + 1, i))
            if which == 3:
                k(f"buffer_store_dwordx4 {vr(o,4)}, v4, s[12:15], s{50+cb} offen offset:{i*1024}")
                for d in range(4):
                    k(f"v_lshlrev_b32 v18, 16, v{o+d}\nv_and_b32 v19, 0xffff0000, v{o+d}")
                    k(f"v_add_f32 v{20+2*i}, v{20+2*i}, v18\nv_fmac_f32 v{21+2*i}, v18, v18")
                    k(f"v_add_f32 v{20+2*i}, v{20+2*i}, v19\nv_fmac_f32 v{21+2*i}, v19, v19")
            else:
                so = "s49" if i else "0"
                k(f"buffer_store_dwordx2 {vr(o,2)}, v16, s[52:55], {so} offen offset:{cb*128}")
                k(f"buffer_store_dwordx2 {vr(o+2,2)}, v16, s[52:55], {so} offen offset:{cb*128+32}")
    if which == 3:
        for op in ("v_permlane16_swap_b32", "v_permlane32_swap_b32"):
            for r in range(4): k(f"v_mov_b32 v{24+r}, v{20+r}")
            k("s_nop 1")
            for r in range(4): k(f"{op} v{20+r}, v{24+r}")
            k("s_nop 1")
            for r in range(4): k(f"v_add_f32 v{20+r}, v{20+r}, v{24+r}")
        k(f"""
        v_lshlrev_b32 v17, 7, v17
        s_lshl_b32 s45, s41, 4
        s_lshl_b32 s46, s44, 3
        s_add_u32 s45, s45, s46
        s_mov_b64 exec, 0xffff
        buffer_store_dwordx2 v[20:21], v17, s[56:59], s45 offen
        buffer_store_dwordx2 v[22:23], v17, s[56:59], s45 offen offset:2048
        """)
    k.label("end")
    return k

def gen_k4():
    c = G()
    c.K, c.TM, c.BK, c.NS, c.SUB, c.MT, c.NT, c.WN = 1024, 256, 32, 5, 1, 4, 14, 1
    c.wmode, c.LW, c.wstride = "gu", 4, F * 2
    c.slot, c.xm, c.tm = 30736, 2, 4
    c.acc_agpr, c.vfx, c.vfw = True, 32, 64
    c.swap = lambda j: False
    c.span, c.cutg, c.pre_vm = 0.85, 0, 8
    k = K("k4_kernel", 256, 256, c.slot * c.NS, vgpr=216, agpr=224)
    head(k, 256)
    k(f"s_load_dwordx2 s[32:33], s[0:1], {KA_WS}\ns_load_dwordx4 s[60:63], s[0:1], {KA_WG}")
    def srds(k):
        k("s_cmp_ge_u32 s42, 2\ns_cselect_b32 s34, s62, s60\ns_cselect_b32 s35, s63, s61")
        k.srd(4, 32, WS_H, S * D * 2)
        k.srd(8, 34, -BIAS, D * F * 2 + BIAS)
        k.srd(12, 32, WS_ACT, S * F * 2)
        k.srd(52, 32, WS_ST, S * 128)
        k.srd(56, 32, WS_CS, 2 * F * 4)
    c.srds = srds
    def pre(k):
        k("s_lshl_b32 s45, s40, 15\nv_lshlrev_b32 v16, 7, v0")
        for j in range(8): k(f"buffer_load_dwordx4 {vr(176+4*j,4)}, v16, s[52:55], s45 offen offset:{16*j}")
    c.pre = pre
    gemm_main(k, c)
    k(f"""
    v_and_b32 v16, 1, v2
    v_lshlrev_b32 v16, 4, v16
    v_lshrrev_b32 v17, 1, v2
    v_mul_u32_u24 v17, {F*4}, v17
    v_add_u32 v16, v16, v17
    s_mul_i32 s45, s41, 448
    """)
    for j in range(14): k(f"buffer_load_dwordx4 {vr(64+4*j,4)}, v16, s[56:59], s45 offen offset:{32*j}")
    k("v_add_f32 v18, v176, v178\nv_add_f32 v19, v177, v179")
    for j in range(2, 16): k(f"v_add_f32 v18, v18, v{176+2*j}\nv_add_f32 v19, v19, v{177+2*j}")
    k(f"""
    v_mul_f32 v18, 0x3a800000, v18
    v_mul_f32 v19, 0x3a800000, v19
    v_fma_f32 v19, -v18, v18, v19
    v_max_f32 v19, 0, v19
    v_add_f32 v19, 0x3727c5ac, v19
    v_rsq_f32 v19, v19
    v_lshlrev_b32 v20, 2, v3
    """)
    for i in range(4):
        k(f"ds_bpermute_b32 v{24+i}, v20, v18 offset:{64*i}\nds_bpermute_b32 v{28+i}, v20, v19 offset:{64*i}")
    k(f"""
    v_mov_b32 v21, 1.0
    v_mov_b32 v22, 0xbfb8aa3b
    v_cmp_gt_u32 vcc, 32, v1
    s_nop 1
    v_cndmask_b32 v21, v21, v22, vcc
    s_waitcnt lgkmcnt(0)
    """)
    for i in range(4): k(f"v_mul_f32 v{28+i}, v{28+i}, v21")
    k(f"""
    s_lshl_b32 s45, s40, 2
    s_add_u32 s45, s45, s42
    s_mul_i32 s45, s45, {112*4096}
    s_mul_i32 s46, s41, 7
    s_waitcnt vmcnt(0)
    """)
    for p in range(7):
        k(f"""
        s_add_u32 s47, s46, {p}
        s_lshr_b32 s48, s47, 1
        s_lshl_b32 s48, s48, 12
        s_and_b32 s47, s47, 1
        s_lshl_b32 s47, s47, 3
        s_add_u32 s48, s48, s47
        s_add_u32 s48, s48, s45
        """)
        for i in range(4):
            t = 128 + 16 * (i % 2)
            for hf in range(2):
                j = 2 * p + hf
                for r in range(4): k(f"v_accvgpr_read_b32 v{t+4*hf+r}, a{4*(j*4+i)+r}")
            for hf in range(2):
                j = 2 * p + hf
                for r in range(4): k(f"v_fma_f32 v{t+4*hf+r}, -v{24+i}, v{64+4*j+r}, v{t+4*hf+r}")
            for r in range(8): k(f"v_mul_f32 v{t+r}, v{28+i}, v{t+r}")
            k("s_nop 1")
            for r in range(4): k(f"v_permlane32_swap_b32 v{t+r}, v{t+4+r}")
            k("s_nop 1")
            for r in range(4): k(f"v_exp_f32 v{t+r}, v{t+r}")
            for r in range(4): k(f"v_add_f32 v{t+r}, 1.0, v{t+r}")
            for r in range(4): k(f"v_rcp_f32 v{t+r}, v{t+r}")
            for r in range(4): k(f"v_mul_f32 v{t+r}, v{t+r}, v{t+4+r}")
            k(f"v_cvt_pk_bf16_f32 v{t+8}, v{t}, v{t+1}\nv_cvt_pk_bf16_f32 v{t+9}, v{t+2}, v{t+3}")
            k(f"buffer_store_dwordx2 {vr(t+8,2)}, v4, s[12:15], s48 offen offset:{i*1024}")
    k.label("end")
    return k
```

```python
from common import *
def gen_k0():
    k = K("k0_kernel", 240, 256, 4096, vgpr=128)
    k(f"""
    s_cmp_ge_u32 s2, 240
    s_cbranch_scc1 {k.lab('end')}
    s_load_dwordx2 s[4:5], s[0:1], {KA_X}
    s_load_dwordx2 s[6:7], s[0:1], {KA_WS}
    s_load_dwordx4 s[24:27], s[0:1], {KA_WG}
    v_and_b32 v1, 63, v0
    v_lshrrev_b32 v2, 6, v0
    s_waitcnt lgkmcnt(0)
    s_cmp_ge_u32 s2, 128
    s_cbranch_scc1 {k.lab('cs')}
    """)
    k.srd(8, 4, 0, S * D * 2)
    k.srd(12, 6, WS_XN, S * D * 2)
    k(f"""
    v_and_b32 v3, 15, v1
    v_lshrrev_b32 v4, 4, v1
    s_lshl_b32 s16, s2, 15
    v_lshlrev_b32 v5, 11, v3
    v_lshl_add_u32 v5, v2, 9, v5
    v_lshl_add_u32 v5, v4, 3, v5
    """)
    for kg in range(8):
        k(f"buffer_load_dwordx2 {vr(16+4*kg,2)}, v5, s[8:11], s16 offen offset:{kg*64}")
        k(f"buffer_load_dwordx2 {vr(18+4*kg,2)}, v5, s[8:11], s16 offen offset:{kg*64+32}")
    k("v_mov_b32 v6, 0\nv_mov_b32 v7, 0")
    for r in range(32):
        if r % 4 == 0: k(f"s_waitcnt vmcnt({14 - 2*(r//4)})")
        k(f"v_lshlrev_b32 v{48+2*r}, 16, v{16+r}")
        k(f"v_and_b32 v{49+2*r}, 0xffff0000, v{16+r}")
        k(f"v_add_f32 v6, v6, v{48+2*r}\nv_fmac_f32 v7, v{48+2*r}, v{48+2*r}")
        k(f"v_add_f32 v6, v6, v{49+2*r}\nv_fmac_f32 v7, v{49+2*r}, v{49+2*r}")
    k(f"""
    v_lshlrev_b32 v8, 7, v3
    v_lshl_add_u32 v9, v2, 5, v8
    v_lshl_add_u32 v9, v4, 3, v9
    ds_write_b64 v9, v[6:7]
    s_waitcnt lgkmcnt(0)
    s_barrier
    """)
    for j in range(8): k(f"ds_read_b128 {vr(16+4*j,4)}, v8 offset:{16*j}")
    k("s_waitcnt lgkmcnt(0)")
    k("v_add_f32 v6, v16, v18\nv_add_f32 v7, v17, v19")
    for j in range(2, 16): k(f"v_add_f32 v6, v6, v{16+2*j}\nv_add_f32 v7, v7, v{17+2*j}")
    k(f"""
    v_mul_f32 v6, 0x3a800000, v6
    v_mul_f32 v7, 0x3a800000, v7
    v_fma_f32 v7, -v6, v6, v7
    v_max_f32 v7, 0, v7
    v_add_f32 v7, 0x3727c5ac, v7
    v_rsq_f32 v7, v7
    s_nop 0
    v_mul_f32 v6, v6, v7
    """)
    for r in range(64): k(f"v_fma_f32 v{48+r}, v{48+r}, v7, -v6")
    for r in range(32): k(f"v_cvt_pk_bf16_f32 v{16+r}, v{48+2*r}, v{49+2*r}")
    k(f"""
    s_lshr_b32 s17, s2, 2
    s_lshl_b32 s17, s17, 17
    s_and_b32 s18, s2, 3
    s_lshl_b32 s18, s18, 10
    s_add_u32 s17, s17, s18
    v_lshlrev_b32 v5, 4, v1
    v_lshl_add_u32 v5, v2, 15, v5
    """)
    for kg in range(8):
        k(f"buffer_store_dwordx4 {vr(16+4*kg,4)}, v5, s[12:15], s17 offen")
        if kg < 7: k("s_add_u32 s17, s17, 4096")
    k(f"s_branch {k.lab('end')}")
    k.label("cs")
    k(f"""
    s_sub_u32 s16, s2, 128
    s_cmp_ge_u32 s16, 56
    s_cselect_b32 s4, s26, s24
    s_cselect_b32 s5, s27, s25
    s_cselect_b32 s17, 56, 0
    s_sub_u32 s17, s16, s17
    s_lshl_b32 s17, s17, 7
    """)
    k.srd(8, 4, 0, D * F * 2)
    k.srd(12, 6, WS_CS, 2 * F * 4)
    k(f"""
    v_lshrrev_b32 v3, 3, v0
    v_and_b32 v4, 7, v0
    v_mul_u32_u24 v5, {F*2}, v3
    v_lshl_add_u32 v5, v4, 4, v5
    """)
    for j in range(8): k(f"v_mov_b32 v{8+j}, 0")
    for half in range(2):
        for i in range(16):
            k(f"buffer_load_dwordx4 {vr(16+4*i,4)}, v5, s[8:11], s17 offen")
            k(f"s_add_u32 s17, s17, {32*F*2}")
        for i in range(16):
            k(f"s_waitcnt vmcnt({15-i})")
            for j in range(4):
                k(f"v_lshlrev_b32 v6, 16, v{16+4*i+j}\nv_and_b32 v7, 0xffff0000, v{16+4*i+j}")
                k(f"v_add_f32 v{8+2*j}, v{8+2*j}, v6\nv_add_f32 v{9+2*j}, v{9+2*j}, v7")
    for j in range(8):
        k(f"v_mov_b32 v{16+j}, v{8+j}")
    k("s_nop 1")
    for j in range(8):
        k(f"v_permlane32_swap_b32 v{8+j}, v{16+j}")
    k("s_nop 1")
    for j in range(8):
        k(f"v_add_f32 v{8+j}, v{8+j}, v{16+j}")
    k(f"""
    v_and_b32 v6, 31, v1
    v_lshl_add_u32 v6, v2, 5, v6
    v_lshlrev_b32 v6, 5, v6
    ds_write_b128 v6, v[8:11]
    ds_write_b128 v6, v[12:15] offset:16
    s_waitcnt lgkmcnt(0)
    s_barrier
    v_lshlrev_b32 v6, 2, v1
    """)
    for r in range(16): k(f"ds_read_b32 v{16+r}, v6 offset:{256*r}")
    k("s_waitcnt lgkmcnt(0)")
    for r in range(1, 16): k(f"v_add_f32 v16, v16, v{16+r}")
    k(f"""
    s_lshl_b32 s16, s16, 8
    v_cmp_gt_u32 vcc, 64, v0
    s_and_saveexec_b64 s[20:21], vcc
    s_cbranch_execz {k.lab('end')}
    buffer_store_dword v16, v6, s[12:15], s16 offen
    """)
    k.label("end")
    return k
```

```python
from common import *
def gen_k2(force_fallback=False):
    NS = 6; SLOT = 16384
    k = K("k2_kernel", 256, 512, NS * SLOT, vgpr=144)
    Q, NM, SS, PP, O, LL, SEL, KF, VF = 8, 16, 32, 64, 80, 96, 100, 104, 120
    M32 = "v_mfma_f32_32x32x16_bf16"; M16 = "v_mfma_f32_16x16x32_bf16"
    k(f"""
    s_cmp_ge_u32 s2, 256
    s_cbranch_scc1 {k.lab('end')}
    s_load_dwordx2 s[32:33], s[0:1], {KA_WS}
    v_lshrrev_b32 v2, 6, v0
    v_and_b32 v1, 63, v0
    v_readfirstlane_b32 s42, v2
    s_and_b32 s38, s2, 7
    s_lshr_b32 s39, s2, 3
    s_lshl_b32 s40, s38, 2
    s_lshr_b32 s45, s39, 3
    s_add_u32 s40, s40, s45
    s_and_b32 s41, s39, 7
    v_lshlrev_b32 v4, 4, v1
    s_lshl_b32 s16, s40, 18
    s_lshl_b32 s18, s42, 11
    s_add_u32 s16, s16, s18
    s_lshl_b32 s45, s40, 6
    s_lshl_b32 s46, s41, 3
    s_add_u32 s45, s45, s46
    s_add_u32 s45, s45, s42
    s_lshl_b32 s17, s45, 11
    s_mov_b32 s23, 0
    s_mov_b32 s24, 0
    s_mov_b32 s25, 0
    s_mov_b32 s27, {-(NS-1)*SLOT & 0xffffffff}
    s_mov_b32 s28, {SLOT}
    s_waitcnt lgkmcnt(0)
    """)
    k.srd(4, 32, WS_KV, 8 * MB)
    k.srd(8, 32, WS_Q, 4 * MB)
    k.srd(12, 32, WS_O, 4 * MB)
    k("s_mov_b32 s29, s6")
    dma = [f"s_add_u32 s24, s24, 1", f"s_cmp_eq_u32 s24, {NS}", "s_cselect_b32 s22, s27, s28", "s_cselect_b32 s24, 0, s24",
           "s_cmp_lt_u32 s23, 16", "s_cselect_b32 s6, s29, 0", "s_mov_b32 m0, s18", "s_add_u32 s23, s23, 1",
           "buffer_load_dwordx4 v4, s[4:7], s16 offen lds", "buffer_load_dwordx4 v4, s[4:7], s16 offen offset:1024 lds",
           f"s_add_u32 s16, s16, {SLOT}", "s_add_u32 s18, s18, s22"]
    k(f"buffer_load_dwordx4 {vr(Q,4)}, v4, s[8:11], s17 offen\nbuffer_load_dwordx4 {vr(Q+4,4)}, v4, s[8:11], s17 offen offset:1024")
    for s in range(NS - 1): k.ext(dma)
    k(f"""
    v_lshrrev_b32 v2, 4, v1
    v_lshrrev_b32 v3, 2, v1
    v_xor_b32 v2, v2, v3
    v_and_b32 v2, 1, v2
    v_mov_b32 v3, 0x3f803f80
    v_cmp_eq_u32 vcc, 0, v2
    v_mov_b32 v5, v4
    v_mov_b32 v6, v4
    v_cndmask_b32 v{SEL}, 0, v3, vcc
    """)
    for r in range(1, 4): k(f"v_mov_b32 v{SEL+r}, v{SEL}")
    for r in list(range(O, O + 16)) + list(range(LL, LL + 4)) + list(range(PP + 8, PP + 16)) + list(range(VF + 8, VF + 16)):
        k(f"v_mov_b32 v{r}, 0")
    k(f"s_waitcnt vmcnt({2*(NS-2)})\ns_barrier")
    for t in range(2):
        k(f"ds_read_b128 {vr(KF+8*t,4)}, v5 offset:{t*4096}\nds_read_b128 {vr(KF+8*t+4,4)}, v5 offset:{t*4096+1024}")
    k(f"""
    s_waitcnt lgkmcnt(2)
    {M32} {vr(SS,16)}, {vr(KF,4)}, {vr(Q,4)}, 0
    {M32} {vr(SS,16)}, {vr(KF+4,4)}, {vr(Q+4,4)}, {vr(SS,16)}
    s_nop 15
    """)
    def rowmax(dst, tmp, src):
        k(f"v_max3_f32 v{dst}, v{src}, v{src+1}, v{src+2}")
        for r in range(3, 15, 2): k(f"v_max3_f32 v{dst}, v{dst}, v{src+r}, v{src+r+1}")
        k(f"v_max_f32 v{dst}, v{dst}, v{src+15}\nv_mov_b32 v{tmp}, v{dst}\ns_nop 1\nv_permlane32_swap_b32 v{dst}, v{tmp}\ns_nop 1\nv_max_f32 v{dst}, v{dst}, v{tmp}")
    rowmax(2, 3, SS)
    for r in range(16): k(f"v_sub_f32 v{NM+r}, 0, v2")
    k(f"""
    s_nop 1
    {M32} {vr(SS,16)}, {vr(KF,4)}, {vr(Q,4)}, {vr(NM,16)}
    {M32} {vr(SS,16)}, {vr(KF+4,4)}, {vr(Q+4,4)}, {vr(SS,16)}
    s_mov_b32 s20, 16
    s_nop 7
    s_nop 3
    """)
    k.label("loop")
    for u in range(4):
        cur, nxt = u % 2, 1 - u % 2
        Sc, Sn, Pc, Pp = SS + 16 * cur, SS + 16 * nxt, PP + 8 * cur, PP + 8 * nxt
        Kn, Kw, Vp, Vw = KF + 8 * nxt, KF + 8 * cur, VF + 8 * nxt, VF + 8 * cur
        k("s_waitcnt lgkmcnt(0)")
        if u == 2:
            k(f"s_waitcnt vmcnt({2*(NS-3)})")
            k(f"s_add_u32 s25, s25, 1\ns_cmp_eq_u32 s25, {NS}\ns_cselect_b32 s26, s27, s28\ns_cselect_b32 s25, 0, s25\ns_barrier")
            k("v_add_u32 v5, s26, v5")
        mf = [f"{M32} {vr(Sn,16)}, {vr(Kn,4)}, {vr(Q,4)}, {vr(NM,16)}",
              f"{M32} {vr(O,16)}, {vr(Vp,4)}, {vr(Pp,4)}, {vr(O,16)}",
              f"{M32} {vr(Sn,16)}, {vr(Kn+4,4)}, {vr(Q+4,4)}, {vr(Sn,16)}",
              f"{M16} {vr(LL,4)}, {vr(SEL,4)}, {vr(Pp,4)}, {vr(LL,4)}",
              f"{M32} {vr(O,16)}, {vr(Vp+4,4)}, {vr(Pp+4,4)}, {vr(O,16)}",
              f"{M16} {vr(LL,4)}, {vr(SEL,4)}, {vr(Pp+4,4)}, {vr(LL,4)}"]
        va = []
        for i in range(16):
            va.append(f"v_exp_f32 v{Sc+i}, v{Sc+i}")
            if i % 2 == 1 and i >= 3: va.append(f"v_cvt_pk_bf16_f32 v{Pc+(i-3)//2}, v{Sc+i-3}, v{Sc+i-2}")
        ko = ((u + 2) % 4) * 4096
        rd = [f"ds_read_b128 {vr(Kw,4)}, v5 offset:{ko}", f"ds_read_b128 {vr(Kw+4,4)}, v5 offset:{ko+1024}",
              f"ds_read_b128 {vr(Vw,4)}, v6 offset:{u*4096+2048}", f"ds_read_b128 {vr(Vw+4,4)}, v6 offset:{u*4096+3072}"]
        extra = rd + (dma if u == 2 else [])
        body = []
        pos = [0, 3, 7, 11, 14, 18]
        for i, x in enumerate(va):
            if i in pos: body.append(mf[pos.index(i)])
            body.append(x)
        body = interleave(body, extra, span=0.8, start=1)
        k.ext(body)
        if u == 3: k("v_mov_b32 v6, v5\ns_sub_u32 s20, s20, 1\ns_cmp_lg_u32 s20, 0")
        else: k("s_nop 0")
        k(f"v_cvt_pk_bf16_f32 v{Pc+7}, v{Sc+14}, v{Sc+15}")
    k(f"s_cbranch_scc1 {k.lab('loop')}")
    k(f"""
    s_waitcnt lgkmcnt(0)
    s_nop 1
    {M32} {vr(O,16)}, {vr(VF+8,4)}, {vr(PP+8,4)}, {vr(O,16)}
    {M16} {vr(LL,4)}, {vr(SEL,4)}, {vr(PP+8,4)}, {vr(LL,4)}
    {M32} {vr(O,16)}, {vr(VF+12,4)}, {vr(PP+12,4)}, {vr(O,16)}
    {M16} {vr(LL,4)}, {vr(SEL,4)}, {vr(PP+12,4)}, {vr(LL,4)}
    s_nop 15
    v_mul_f32 v2, 0, v{LL}
    """)
    for r in range(16): k(f"v_fmac_f32 v2, 0, v{O+r}")
    k(f"""
    v_cmp_u_f32 vcc, v2, v2
    s_nop 4
    s_cbranch_vcc{'z' if not force_fallback else 'nz'} {k.lab('fin')}
    """)
    k("s_mov_b32 s6, s29\ns_lshl_b32 s16, s40, 18\ns_mov_b32 s20, 64\nv_mov_b32 v7, 0xff800000")
    for r in list(range(O, O + 16)) + list(range(LL, LL + 4)): k(f"v_mov_b32 v{r}, 0")
    k.label("fb")
    k(f"""
    buffer_load_dwordx4 {vr(KF,4)}, v4, s[4:7], s16 offen
    buffer_load_dwordx4 {vr(KF+4,4)}, v4, s[4:7], s16 offen offset:1024
    buffer_load_dwordx4 {vr(VF,4)}, v4, s[4:7], s16 offen offset:2048
    buffer_load_dwordx4 {vr(VF+4,4)}, v4, s[4:7], s16 offen offset:3072
    s_add_u32 s16, s16, 4096
    s_waitcnt vmcnt(0)
    {M32} {vr(SS,16)}, {vr(KF,4)}, {vr(Q,4)}, 0
    {M32} {vr(SS,16)}, {vr(KF+4,4)}, {vr(Q+4,4)}, {vr(SS,16)}
    s_nop 15
    """)
    rowmax(2, 3, SS)
    k("v_max_f32 v2, v2, v7\nv_sub_f32 v3, v7, v2\nv_exp_f32 v3, v3\nv_mov_b32 v7, v2")
    for r in range(16): k(f"v_sub_f32 v{SS+r}, v{SS+r}, v2")
    for r in range(16): k(f"v_exp_f32 v{SS+r}, v{SS+r}")
    for r in list(range(O, O + 16)) + list(range(LL, LL + 4)): k(f"v_mul_f32 v{r}, v{r}, v3")
    for r in range(8): k(f"v_cvt_pk_bf16_f32 v{PP+r}, v{SS+2*r}, v{SS+2*r+1}")
    k(f"""
    s_nop 1
    {M32} {vr(O,16)}, {vr(VF,4)}, {vr(PP,4)}, {vr(O,16)}
    {M16} {vr(LL,4)}, {vr(SEL,4)}, {vr(PP,4)}, {vr(LL,4)}
    {M32} {vr(O,16)}, {vr(VF+4,4)}, {vr(PP+4,4)}, {vr(O,16)}
    {M16} {vr(LL,4)}, {vr(SEL,4)}, {vr(PP+4,4)}, {vr(LL,4)}
    s_sub_u32 s20, s20, 1
    s_cmp_lg_u32 s20, 0
    s_nop 15
    s_cbranch_scc1 {k.lab('fb')}
    """)
    k.label("fin")
    k(f"""
    v_rcp_f32 v2, v{LL}
    s_lshl_b32 s45, s41, 2
    s_lshr_b32 s46, s42, 1
    s_add_u32 s45, s45, s46
    s_lshl_b32 s45, s45, 5
    s_add_u32 s45, s45, s40
    s_lshl_b32 s45, s45, 12
    s_and_b32 s46, s42, 1
    s_lshl_b32 s46, s46, 11
    s_add_u32 s45, s45, s46
    v_and_b32 v3, 15, v1
    v_lshlrev_b32 v3, 4, v3
    v_and_b32 v5, 16, v1
    v_lshl_add_u32 v3, v5, 6, v3
    v_and_b32 v5, 32, v1
    v_lshl_add_u32 v3, v5, 3, v3
    """)
    for r in range(16): k(f"v_mul_f32 v{O+r}, v{O+r}, v2")
    for a in range(2):
        d = SS + 4 * a
        k(f"v_cvt_pk_bf16_f32 v{d}, v{O+4*a}, v{O+4*a+1}\nv_cvt_pk_bf16_f32 v{d+1}, v{O+4*a+2}, v{O+4*a+3}")
        k(f"v_cvt_pk_bf16_f32 v{d+2}, v{O+8+4*a}, v{O+8+4*a+1}\nv_cvt_pk_bf16_f32 v{d+3}, v{O+8+4*a+2}, v{O+8+4*a+3}")
        k(f"buffer_store_dwordx4 {vr(d,4)}, v3, s[12:15], s45 offen offset:{a*512}")
    k.label("end")
    return k
```

```python
import sys
from common import *
from k0 import gen_k0
from gemm import gen_k1, gen_k35, gen_k4
from k2 import gen_k2
out = sys.argv[1] if len(sys.argv) > 1 else "sequential_preLN__softmax_full_mha__glu_gated_glu__prompt.s"
fb = len(sys.argv) > 2 and sys.argv[2] == "fb"
write_file(out, [gen_k0(), gen_k1(), gen_k2(fb), gen_k35(3), gen_k4(), gen_k35(5)])
```

```python
S, D, H, DH, F = 2048, 1024, 32, 32, 3584
MB = 1 << 20
import os
PROF = bool(os.environ.get('PROF'))
def P(name, default):
    v = os.environ.get(name)
    return default if v is None else type(default)(v)
WS_XN = 0
WS_Q = 4 * MB
WS_KV = 8 * MB
WS_O = 16 * MB
WS_H = 20 * MB
WS_ACT = 24 * MB
WS_ST = 40 * MB
WS_CS = 41 * MB
WS_CNT = 41 * MB + 512 * 1024
WS_END = 42 * MB
PX, PWQKV, PWO, PWG, PWU, PWD, POUT, PDBG, PWS = 64, 66, 68, 72, 74, 76, 78, 80, 82
SC = P('SC', ' sc1')
KA_X, KA_WQKV, KA_WO, KA_BX, KA_WG, KA_WU, KA_WD, KA_OUT, KA_DBG, KA_WS = [8 * i for i in range(10)]

class K:
    def __init__(self, name, grid, block, lds, vgpr, agpr=0, sgpr=96):
        self.name, self.grid, self.block, self.lds = name, grid, block, lds
        self.vgpr, self.agpr, self.sgpr = vgpr, agpr, sgpr
        self.L = []
    def __call__(self, s):
        for line in s.strip("\n").split("\n"):
            line = line.strip()
            if line: self.L.append(line)
    def ext(self, lst):
        for x in lst: self(x)
    def stamp(self, i):
        if not PROF: return
        self(f"s_memrealtime s[98:99]\ns_memtime s[100:101]\ns_waitcnt lgkmcnt(0)\nv_accvgpr_write_b32 a{200+2*i}, s98\nv_accvgpr_write_b32 a{201+2*i}, s100")
    def stamp_end(self, n):
        if not PROF: return
        self.srd(84, 82, WS_END, 1 << 20)
        self(f"""
        s_mov_b64 exec, 1
        s_lshl_b32 s88, s2, 8
        v_mov_b32 v0, 0
        s_cmp_lg_u32 s42, 0
        s_cbranch_scc1 {self.lab('end')}
        """)
        for j in range(2 * n):
            self(f"buffer_store_dword a{200+j}, v0, s[84:87], s88 offen offset:{4*j}")
    def lab(self, n): return f"{self.name}_{n}"
    def label(self, n): self.L.append(f"{self.name}_{n}:")
    def text(self):
        body = "\n".join(("" if l.endswith(":") else "    ") + l for l in self.L)
        return f".globl {self.name}\n.p2align 8\n.type {self.name},@function\n{self.name}:\n{body}\n    s_endpgm\n"
    def desc(self):
        acc = (self.vgpr + 3) // 4 * 4
        nfv = acc + self.agpr if self.agpr else self.vgpr
        return f""".p2align 6
.amdhsa_kernel {self.name}
  .amdhsa_next_free_vgpr {nfv}
  .amdhsa_next_free_sgpr {self.sgpr}
  .amdhsa_accum_offset {acc}
  .amdhsa_group_segment_fixed_size 0
  .amdhsa_kernarg_size 80
  .amdhsa_user_sgpr_count 2
  .amdhsa_user_sgpr_kernarg_segment_ptr 1
  .amdhsa_system_sgpr_workgroup_id_x 1
.end_amdhsa_kernel
"""
    def srd(self, d, ptr, off, nbytes):
        if off == 0:
            self(f"s_mov_b32 s{d}, s{ptr}\ns_and_b32 s{d+1}, s{ptr+1}, 0xffff")
        elif off > 0:
            self(f"s_add_u32 s{d}, s{ptr}, {off}\ns_addc_u32 s{d+1}, s{ptr+1}, 0\ns_and_b32 s{d+1}, s{d+1}, 0xffff")
        else:
            self(f"s_sub_u32 s{d}, s{ptr}, {-off}\ns_subb_u32 s{d+1}, s{ptr+1}, 0\ns_and_b32 s{d+1}, s{d+1}, 0xffff")
        self(f"s_mov_b32 s{d+2}, {nbytes}\ns_mov_b32 s{d+3}, 0x20000")

def vr(a, n=1): return f"v{a}" if n == 1 else f"v[{a}:{a+n-1}]"
def ar(a, n=1): return f"a{a}" if n == 1 else f"a[{a}:{a+n-1}]"
def sr(a, n=1): return f"s{a}" if n == 1 else f"s[{a}:{a+n-1}]"

def interleave(main, fill, span=1.0, start=0):
    n = len(main); out = []
    last = max(start + 1, int(n * span))
    slots = [[] for _ in range(n)]
    m = len(fill)
    for j, f in enumerate(fill):
        p = start + (j * (last - start)) // max(1, m)
        slots[min(p, n - 1)].append(f)
    for i in range(n):
        out.append(main[i]); out += slots[i]
    return out

def merge(*lists):
    items = []
    for li, l in enumerate(lists):
        for j, x in enumerate(l):
            items.append(((j + 0.5) / len(l), li, j, x))
    items.sort(key=lambda t: (t[0], t[1], t[2]))
    return [t[3] for t in items]

HEADER = open("sequential_preLN__softmax_full_mha__glu_gated_glu__prompt.s.ref").read().split("; Override launch")[0]
def write_file(path, launches):
    seen = []
    with open(path, "w") as f:
        f.write(HEADER)
        for k in launches:
            f.write(f"; @launch {'kernel=' + k.name + ' ' if len(launches) > 1 or P('LIST', 0) else ''}grid=({k.grid},1,1) block=({k.block},1,1) lds={k.lds}\n")
        f.write('.amdgcn_target "amdgcn-amd-amdhsa--gfx950"\n.text\n')
        for k in launches:
            if k not in seen:
                seen.append(k); f.write(k.text())
        f.write('.section .rodata,"a"\n')
        for k in seen: f.write(k.desc())
```

```python
from common import *
BIAS = 4096
ST = P('ST', '')

class G:
    pass

def gemm_main(k, c, boundary):
    KGS = c.BK // 32; KG = c.K // 32
    PH = KGS // c.SUB
    NS, LA = c.NS, c.LA
    nst = c.K // c.BK
    assert nst % NS == 0 and (NS * PH) % 2 == 0 and LA <= NS
    nA = (c.TM // 64) * KGS
    Wreg = nA * 4096
    L = nA + c.LW
    fr = ar if c.frag_agpr else vr
    acc = (lambda j, i: ar(4 * (j * c.MT + i), 4)) if c.acc_agpr else (lambda j, i: vr(c.vacc + 4 * (j * c.MT + i), 4))
    XF = lambda st, kk, i: c.vfx + ((st * c.SUB + kk) * c.MT + i) * 4
    WF = lambda st, kk, j: c.vfw + ((st * c.SUB + kk) * c.NT + j) * 4
    nWr = 2 if c.wmode == "cb" else 1
    vAd, vWd = 4, 8
    spb = 65536 // c.slot
    nB = (NS + spb - 1) // spb
    vAr = lambda sl: c.vrd + (sl // spb) * (1 + nWr)
    vWr = lambda sl: vAr(sl) + 1
    so = lambda sl: (sl % spb) * c.slot
    lg = lambda x: x.bit_length() - 1
    k(f"""
    v_lshrrev_b32 v2, 4, v1
    v_and_b32 v3, 15, v1
    s_and_b32 s40, s38, {c.xm-1}
    s_lshl_b32 s40, s40, {lg(c.tm)}
    s_and_b32 s45, s39, {c.tm-1}
    s_add_u32 s40, s40, s45
    s_lshr_b32 s41, s38, {lg(c.xm)}
    s_lshl_b32 s41, s41, {lg(32//c.tm)}
    s_lshr_b32 s45, s39, {lg(c.tm)}
    s_add_u32 s41, s41, s45
    s_lshr_b32 s43, s42, {lg(c.WN)}
    s_and_b32 s44, s42, {c.WN-1}
    v_lshlrev_b32 v{vAd}, 4, v1
    """)
    wpm = 4 // (c.TM // 64)
    k(f"""
    s_lshr_b32 s45, s42, {lg(wpm)}
    s_lshl_b32 s46, s40, {lg(c.TM//64)}
    s_add_u32 s45, s45, s46
    s_mul_i32 s31, s45, {KG*4096}
    s_and_b32 s46, s42, {wpm-1}
    s_mul_i32 s16, s46, {nA*1024}
    s_mul_i32 s18, s42, {nA*1024}
    """)
    if c.TM == 64: wpart = f"s_lshl_b32 s45, s43, {10 + lg(c.MT)}"
    else: wpart = f"s_lshl_b32 s45, s43, {12 + lg(KGS)}"
    k(f"{wpart}\nv_add_u32 v{vAr(0)}, s45, v{vAd}")
    if c.wmode == "cb":
        RGW = c.BK // 32
        k(f"""
        v_lshrrev_b32 v20, 3, v1
        v_and_b32 v21, 7, v1
        v_and_b32 v22, 6, v20
        v_xor_b32 v21, v21, v22
        v_lshlrev_b32 v21, 4, v21
        v_mul_u32_u24 v20, {c.wstride}, v20
        v_add_u32 v20, v20, v21
        """)
        for i in range(c.LW):
            rg, cb = divmod(i, c.NCB)
            k(f"v_add_u32 v{vWd+i}, {BIAS + rg*8*c.wstride + cb*c.cbstride - (i%4)*1024}, v20")
        k(f"""
        s_mul_i32 s17, s42, {RGW*8*c.wstride}
        s_mul_i32 s45, s41, {c.colstep}
        s_add_u32 s17, s17, s45
        s_mul_i32 s19, s42, {c.LW*1024}
        s_add_u32 s19, s19, {Wreg}
        """)
        rdsetup = f"""
        v_lshrrev_b32 v20, 2, v1
        v_and_b32 v20, 7, v20
        v_lshrrev_b32 v21, 1, v20
        s_lshl_b32 s45, s44, 1
        v_xor_b32 v21, s45, v21
        v_lshlrev_b32 v21, 5, v21
        v_lshlrev_b32 v20, 7, v20
        v_lshrrev_b32 v22, 5, v1
        v_mul_u32_u24 v22, {c.NCB*1024*(2 if c.kperm else 1)}, v22
        v_add_u32 v20, v20, v22
        v_and_b32 v22, 3, v1
        v_lshl_add_u32 v20, v22, 3, v20
        v_add_u32 v20, {Wreg}, v20
        v_add_u32 v{vWr(0)}, v20, v21
        v_xor_b32 v21, 32, v21
        v_add_u32 v{vWr(0)+1}, v20, v21
        """
        def wread(sl, st, kk_s, kk, j, half):
            cb, uu = divmod(j, 2)
            return f"ds_read_b64_tr_b16 {fr(WF(st,kk,j)+2*half,2)}, v{vWr(sl)+uu} offset:{so(sl)+((4*kk_s+(1 if c.kperm else 2)*half)*c.NCB+cb)*1024}"
    else:
        k(f"""
        s_and_b32 s45, s42, 1
        s_mul_i32 s45, s45, 192
        v_add_u32 v20, s45, v1
        s_mov_b32 s46, 0x12492493
        """)
        for i in range(4):
            k(f"""
            v_add_u32 v21, {64*i}, v20
            v_mul_hi_u32 v22, v21, s46
            v_mul_u32_u24 v23, 14, v22
            v_sub_u32 v21, v21, v23
            v_mul_u32_u24 v22, {c.wstride}, v22
            v_lshl_add_u32 v22, v21, 4, v22
            v_add_u32 v{vWd+i}, {BIAS - i*1024}, v22
            """)
        k(f"""
        s_mul_i32 s17, s41, 224
        s_lshr_b32 s46, s42, 1
        s_mul_i32 s46, s46, 7168
        s_lshl_b32 s45, s45, 4
        s_add_u32 s19, s45, s46
        s_add_u32 s19, s19, {Wreg}
        """)
        rdsetup = f"""
        v_lshrrev_b32 v20, 2, v1
        v_mul_u32_u24 v20, 224, v20
        v_and_b32 v21, 3, v1
        v_lshl_add_u32 v20, v21, 3, v20
        v_add_u32 v{vWr(0)}, {Wreg}, v20
        """
        def wread(sl, st, kk_s, kk, j, half):
            return f"ds_read_b64_tr_b16 {fr(WF(st,kk,j)+2*half,2)}, v{vWr(sl)} offset:{so(sl) + half*16*224 + (j%7)*32 + (j//7)*7168}"
    def xread(sl, st, kk_s, kk, i):
        return f"ds_read_b128 {fr(XF(st,kk,i),4)}, v{vAr(sl)} offset:{so(sl)+(kk_s*4+i)*1024}"
    def reads(sl, st, ph):
        out = []
        for kk in range(c.SUB):
            kk_s = ph * c.SUB + kk
            out += [xread(sl, st, kk_s, kk, i) for i in range(c.MT)]
            for j in range(c.NT): out += [wread(sl, st, kk_s, kk, j, 0), wread(sl, st, kk_s, kk, j, 1)]
        return out
    def dmaA(sl):
        return [f"s_add_u32 m0, s18, {sl*c.slot}", f"s_add_u32 s16, s16, {KGS*4096}"] + \
               [f"buffer_load_dwordx4 v{vAd}, s[4:7], s16 offen offset:{i*1024}{SC} lds" for i in range(nA)]
    def dmaW(sl):
        o = []
        for i in range(c.LW):
            if i % 4 == 0:
                o += [f"s_add_u32 m0, s19, {sl*c.slot + i*1024}", "s_nop 0" if i else f"s_add_u32 s17, s17, {c.BK*c.wstride}"]
            o += [f"buffer_load_dwordx4 v{vWd+i}, s[8:11], s17 offen offset:{(i%4)*1024} lds"]
        return o
    def dma(sl): return dmaA(sl) + dmaW(sl)
    k(f"s_sub_u32 s17, s17, {c.BK*c.wstride}\ns_sub_u32 s16, s16, {KGS*4096}")
    c.srds(k)
    k(f"s_add_u32 s4, s4, s31\ns_addc_u32 s5, s5, 0\ns_mov_b32 s6, {KG*4096}")
    def split(sl):
        return (dmaA(sl), dmaW(sl)) if PH == 2 else (dma(sl), [])
    nWpre = LA - 1 if PH == 2 else LA
    def idle():
        for s in range(nWpre): k.ext(dmaW(s))
        k(rdsetup)
        for b in range(1, nB):
            for r in range(1 + nWr): k(f"v_add_u32 v{c.vrd+b*(1+nWr)+r}, {b*spb*c.slot}, v{c.vrd+r}")
        for j in range(c.NT):
            for i in range(c.MT):
                for r in range(4):
                    k(f"v_accvgpr_write_b32 a{4*(j*c.MT+i)+r}, 0" if c.acc_agpr else f"v_mov_b32 v{c.vacc+4*(j*c.MT+i)+r}, 0")
        c.pre0(k)
    boundary(0, idle)
    for s in range(LA):
        if s == LA - 1: c.pre(k)
        k.ext(dmaA(s))
    k(f"s_waitcnt vmcnt({nA + c.pre_vm})\ns_barrier")
    k.stamp(c.st)
    k.ext(reads(0, 0, 0))
    k(f"s_mov_b32 s20, {nst // NS}\ns_waitcnt lgkmcnt(0)")
    k.label(c.name + "loop")
    for p in range(NS * PH):
        sl, ph = divmod(p, PH)
        st = p % 2
        lastph = ph == PH - 1
        mf = []
        for kk in range(c.SUB):
            for j in range(c.NT):
                for i in range(c.MT):
                    a, b = fr(WF(st, kk, j), 4), fr(XF(st, kk, i), 4)
                    if c.swap(j): a, b = b, a
                    mf.append(f"v_mfma_f32_16x16x32_bf16 {acc(j,i)}, {a}, {b}, {acc(j,i)}")
        if lastph:
            rd = reads((sl + 1) % NS, 1 - st, 0)
            k(mf[0]); mf = mf[1:]
            k(f"s_waitcnt vmcnt({(LA-2)*L})\ns_barrier")
            fill = merge(rd, split((sl + LA) % NS)[0])
        else:
            rd = reads(sl, 1 - st, ph + 1)
            p2 = split((sl + LA - 1) % NS)[1]
            fill = merge(rd, p2) if p2 else rd
        body = interleave(mf, fill, span=c.span)
        if p == NS * PH - 1:
            body.insert(len(body) - 2, "s_sub_u32 s20, s20, 1"); body.insert(len(body) - 1, "s_cmp_lg_u32 s20, 0")
        k.ext(body)
        k("s_waitcnt lgkmcnt(0)")
    k(f"s_cbranch_scc1 {k.lab(c.name + 'loop')}")
    k("s_waitcnt vmcnt(0)\ns_barrier\ns_nop 5")
    k.stamp(c.st + 1)

def cvt_pair(k, dst, a, b):
    k(f"v_cvt_pk_bf16_f32 v{dst}, v{a}, v{a+1}\nv_cvt_pk_bf16_f32 v{dst+1}, v{a+2}, v{a+3}")
    k(f"v_cvt_pk_bf16_f32 v{dst+2}, v{b}, v{b+1}\nv_cvt_pk_bf16_f32 v{dst+3}, v{b+2}, v{b+3}")

def head(k, n):
    k(f"s_cmp_ge_u32 s2, {n}\ns_cbranch_scc1 {k.lab('end')}")

def gen_k1(k, boundary):
    c = G(); c.name, c.st, c.kperm = 'p1', 2, 0
    c.K, c.TM, c.BK, c.NS, c.SUB, c.MT, c.NT, c.WN = 1024, 128, 64, 4, 1, 4, 6, 2
    c.LA, c.vrd, c.frag_agpr = P('LA1', 3), 208, False
    c.wmode, c.NCB, c.LW, c.wstride, c.cbstride, c.colstep = "cb", 3, 6, 6144, 2048, 128
    c.slot, c.xm, c.tm = 40960, 2, 8
    c.acc_agpr, c.vacc, c.vfx, c.vfw = False, 32, 128, 160
    c.swap = lambda j: j >= 4
    c.span, c.cutg, c.pre_vm = P('SP1', 0.85), 0, 0
    def srds(k):
        k.srd(4, PWS, WS_XN, S * D * 2)
        k.srd(8, PWQKV, -BIAS, D * 3 * D * 2 + BIAS)
        k.srd(12, PWS, WS_Q, 12 * MB)
    c.srds = srds
    c.pre = c.pre0 = lambda k: None
    gemm_main(k, c, boundary)
    A = lambda j, i: c.vacc + 4 * (j * c.MT + i)
    k(f"""
    s_lshl_b32 s45, s41, 1
    s_add_u32 s45, s45, s44
    s_lshl_b32 s46, s40, 2
    s_lshl_b32 s47, s43, 1
    s_add_u32 s46, s46, s47
    s_lshl_b32 s45, s45, 6
    s_add_u32 s45, s45, s46
    s_lshl_b32 s46, s45, 11
    s_lshl_b32 s47, s45, 12
    s_add_u32 s47, s47, {WS_KV - WS_Q}
    s_mov_b32 s48, 0x3e8293ee
    """)
    k("""
    v_lshlrev_b32 v10, 9, v2
    v_lshl_add_u32 v11, v3, 4, v10
    v_and_b32 v12, 7, v3
    v_lshlrev_b32 v12, 4, v12
    v_and_b32 v13, 8, v3
    v_lshl_add_u32 v12, v13, 5, v12
    v_add_u32 v12, v12, v10
    """)
    for i in range(4):
        for r in range(4):
            k(f"v_mul_f32 v{A(0,i)+r}, s48, v{A(0,i)+r}\nv_mul_f32 v{A(1,i)+r}, s48, v{A(1,i)+r}")
        cvt_pair(k, 128 + 4 * i, A(0, i), A(1, i))
        k(f"buffer_store_dwordx4 {vr(128+4*i,4)}, v11, s[12:15], s46 offen offset:{(i//2)*2048 + (i%2)*256}{SC}")
    k("s_add_u32 s49, s47, 4096")
    for i in range(4):
        cvt_pair(k, 144 + 4 * i, A(2, i), A(3, i))
        k(f"buffer_store_dwordx4 {vr(144+4*i,4)}, v12, s[12:15], s{47 if i < 2 else 49} offen offset:{(i%2)*128}{SC}")
    for jd in range(2):
        for ii in range(2):
            cvt_pair(k, 160 + 4 * (2 * jd + ii), A(4 + jd, 2 * ii), A(4 + jd, 2 * ii + 1))
            k(f"buffer_store_dwordx4 {vr(160+4*(2*jd+ii),4)}, v11, s[12:15], s{47 if ii == 0 else 49} offen offset:{2048 + jd*256}{SC}")

def gen_k35(k, boundary, which):
    c = G(); c.name, c.st, c.kperm = f'p{which}', 6 if which == 3 else 10, which == 5
    c.K = 1024 if which == 3 else F
    c.TM, c.BK, c.NS, c.SUB, c.MT, c.NT, c.WN = 64, 64, 4, 2, 2, 4, 2
    c.LA, c.vrd, c.frag_agpr = P('LA5', 4), 24, False
    c.wmode, c.NCB, c.LW, c.wstride, c.cbstride, c.colstep = "cb", 2, 4, 2048, 128, 256
    c.slot, c.xm, c.tm = 24576, 4, 8
    c.acc_agpr, c.vacc, c.vfx, c.vfw = False, 32, 64, 96
    c.swap = lambda j: False
    c.span, c.cutg = P('SP5', 0.8), 1
    c.pre_vm = 0
    def srds(k):
        k.srd(4, PWS, WS_O if which == 3 else WS_ACT, S * c.K * 2)
        k.srd(8, PWO if which == 3 else PWD, -BIAS, c.K * D * 2 + BIAS)
        k.srd(12, PWS, WS_H, S * D * 2)
        k.srd(52, PX if which == 3 else POUT, 0, S * D * 2)
        if which == 3: k.srd(56, PWS, WS_ST, S * 128)
    c.srds = srds
    R = 160
    def pre(k):
        k(f"""
        s_lshl_b32 s45, s40, 6
        s_lshl_b32 s46, s43, 5
        s_add_u32 s45, s45, s46
        v_add_u32 v17, s45, v3
        v_lshlrev_b32 v16, 11, v17
        s_lshl_b32 s45, s41, 8
        s_lshl_b32 s46, s44, 6
        s_add_u32 s45, s45, s46
        v_and_b32 v18, 1, v2
        v_lshl_add_u32 v16, v18, 5, v16
        v_lshrrev_b32 v18, 1, v2
        v_lshl_add_u32 v16, v18, 4, v16
        v_add_u32 v16, s45, v16
        s_lshl_b32 s45, s40, 5
        s_lshl_b32 s46, s41, 2
        s_add_u32 s45, s45, s46
        s_add_u32 s45, s45, s44
        s_lshl_b32 s45, s45, 12
        s_lshl_b32 s46, s43, 11
        s_add_u32 s50, s45, s46
        s_add_u32 s51, s50, 8192
        s_mov_b32 s49, 32768
        """)
        for cb in range(2):
            for i in range(2):
                r = R + 4 * (cb * 2 + i)
                if which == 3:
                    so = "s49" if i else "0"
                    k(f"buffer_load_dwordx4 {vr(r,4)}, v16, s[52:55], {so} offen offset:{cb*128}")
                else:
                    for q in range(4): k(f"v_accvgpr_read_b32 v{r+q}, a{184+4*(cb*2+i)+q}")
    c.pre0 = pre; c.pre = lambda k: None
    gemm_main(k, c, boundary)
    A = lambda j, i: c.vacc + 4 * (j * c.MT + i)
    if which == 3:
        for i in range(2): k(f"v_mov_b32 v{20+2*i}, 0\nv_mov_b32 v{21+2*i}, 0")
        for q in range(4): k(f"v_permlane16_swap_b32 v{R+4*q}, v{R+4*q+2}\nv_permlane16_swap_b32 v{R+4*q+1}, v{R+4*q+3}")
    for cb in range(2):
        for i in range(2):
            r = R + 4 * (cb * 2 + i)
            for hf in range(2):
                a = A(2 * cb + hf, i)
                for d in range(2):
                    k(f"v_lshlrev_b32 v18, 16, v{r+2*hf+d}\nv_and_b32 v19, 0xffff0000, v{r+2*hf+d}")
                    k(f"v_add_f32 v{a+2*d}, v{a+2*d}, v18\nv_add_f32 v{a+2*d+1}, v{a+2*d+1}, v19")
            o = 64 + 4 * (cb * 2 + i)
            cvt_pair(k, o, A(2 * cb, i), A(2 * cb + 1, i))
            if which == 3:
                k(f"buffer_store_dwordx4 {vr(o,4)}, v4, s[12:15], s{50+cb} offen offset:{i*1024}{SC}")
                for q in range(4): k(f"v_accvgpr_write_b32 a{184+4*(cb*2+i)+q}, v{o+q}")
                for d in range(4):
                    k(f"v_lshlrev_b32 v18, 16, v{o+d}\nv_and_b32 v19, 0xffff0000, v{o+d}")
                    k(f"v_add_f32 v{20+2*i}, v{20+2*i}, v18\nv_fmac_f32 v{21+2*i}, v18, v18")
                    k(f"v_add_f32 v{20+2*i}, v{20+2*i}, v19\nv_fmac_f32 v{21+2*i}, v19, v19")
            else:
                so = "s49" if i else "0"
                k(f"s_nop 1\nv_permlane16_swap_b32 v{o}, v{o+2}\nv_permlane16_swap_b32 v{o+1}, v{o+3}")
                k(f"buffer_store_dwordx4 {vr(o,4)}, v16, s[52:55], {so} offen offset:{cb*128}")
    if which == 3:
        for op in ("v_permlane16_swap_b32", "v_permlane32_swap_b32"):
            for r in range(4): k(f"v_mov_b32 v{24+r}, v{20+r}")
            k("s_nop 1")
            for r in range(4): k(f"{op} v{20+r}, v{24+r}")
            k("s_nop 1")
            for r in range(4): k(f"v_add_f32 v{20+r}, v{20+r}, v{24+r}")
        k(f"""
        v_lshlrev_b32 v17, 3, v3
        s_lshl_b32 s45, s40, 13
        s_lshl_b32 s46, s41, 10
        s_add_u32 s45, s45, s46
        s_lshl_b32 s46, s44, 9
        s_add_u32 s45, s45, s46
        s_lshl_b32 s46, s43, 8
        s_add_u32 s45, s45, s46
        s_mov_b64 exec, 0xffff
        buffer_store_dwordx2 v[20:21], v17, s[56:59], s45 offen{SC}
        buffer_store_dwordx2 v[22:23], v17, s[56:59], s45 offen offset:128{SC}
        s_mov_b64 exec, -1
        """)

def gen_k4(k, boundary):
    c = G(); c.name, c.st = 'p4', 8
    c.K, c.TM, c.BK, c.NS, c.SUB, c.MT, c.NT, c.WN = 1024, 256, 32, 4, 1, 4, 14, 1
    c.LA, c.vrd, c.frag_agpr = P('LA4', 3), 12, True
    c.wmode, c.LW, c.wstride = "gu", 4, F * 2
    c.slot, c.xm, c.tm = 30720, 2, 4
    c.acc_agpr, c.vacc, c.vfx, c.vfw = False, 32, 0, 32
    c.swap = lambda j: False
    c.span, c.cutg, c.pre_vm = P('SP4', 0.85), 0, 24
    XL = c.slot * c.NS
    def srds(k):
        k("s_cmp_ge_u32 s42, 2\ns_cselect_b32 s34, s74, s72\ns_cselect_b32 s35, s75, s73")
        k.srd(4, PWS, WS_H, S * D * 2)
        k.srd(8, 34, -BIAS, D * F * 2 + BIAS)
        k.srd(12, PWS, WS_ACT, S * F * 2)
        k.srd(52, PWS, WS_ST, S * 128)
        k.srd(56, PWS, WS_CS, 8 * 2 * F * 4)
    c.srds = srds
    def pre(k):
        k(f"""
        s_lshl_b32 s45, s40, 2
        s_add_u32 s45, s45, s42
        s_lshl_b32 s45, s45, 13
        s_add_u32 s47, s45, 4096
        v_lshlrev_b32 v16, 3, v1
        v_cmp_le_u32 vcc, 112, v0
        v_mov_b32 v17, {(F-112)*4}
        s_mul_i32 s46, s41, 448
        v_cndmask_b32 v17, 0, v17, vcc
        v_lshl_add_u32 v17, v0, 2, v17
        """)
        for j in range(16): k(f"buffer_load_dwordx2 {ar(144+2*j,2)}, v16, s[52:55], s{45 if j < 8 else 47} offen offset:{512*(j%8)}{SC}")
        for j in range(8):
            k(f"buffer_load_dword a{176+j}, v17, s[56:59], s46 offen{SC}\ns_add_u32 s46, s46, {2*F*4}")
    c.pre = pre; c.pre0 = lambda k: None
    gemm_main(k, c, boundary)
    A = lambda j, i: c.vacc + 4 * (j * c.MT + i)
    k("v_accvgpr_read_b32 v5, a176")
    for j in range(1, 8): k(f"v_accvgpr_read_b32 v6, a{176+j}\nv_add_f32 v5, v5, v6")
    k(f"v_lshlrev_b32 v6, 2, v0\nv_add_u32 v6, {XL}, v6\nds_write_b32 v6, v5")
    k("v_accvgpr_read_b32 v18, a144\nv_accvgpr_read_b32 v19, a145")
    for j in range(1, 16): k(f"v_accvgpr_read_b32 v6, a{144+2*j}\nv_accvgpr_read_b32 v7, a{145+2*j}\nv_add_f32 v18, v18, v6\nv_add_f32 v19, v19, v7")
    k(f"""
    v_mul_f32 v18, 0xba800000, v18
    v_mul_f32 v19, 0x3a800000, v19
    v_fma_f32 v19, -v18, v18, v19
    v_max_f32 v19, 0, v19
    v_add_f32 v19, 0x3727c5ac, v19
    v_sqrt_f32 v19, v19
    v_lshlrev_b32 v5, 2, v3
    v_lshlrev_b32 v30, 4, v2
    v_add_u32 v30, {XL}, v30
    v_and_b32 v29, 31, v1
    v_lshlrev_b32 v29, 4, v29
    v_and_b32 v28, 32, v1
    v_lshl_add_u32 v29, v28, 5, v29
    """)
    for i in range(4):
        k(f"ds_bpermute_b32 v{8+i}, v5, v18 offset:{64*i}\nds_bpermute_b32 v{12+i}, v5, v19 offset:{64*i}")
    k(f"""
    s_lshl_b32 s45, s40, 2
    s_add_u32 s45, s45, s42
    s_mul_i32 s45, s45, {112*4096}
    s_mul_i32 s46, s41, 7
    s_waitcnt lgkmcnt(0)
    s_barrier
    """)
    k("ds_read_b128 v[20:23], v30\nds_read_b128 v[24:27], v30 offset:448")
    for i in range(4): k(f"v_rcp_f32 v{16+i}, v{12+i}")
    k("s_nop 0")
    for i in range(4): k(f"v_mul_f32 v{16+i}, 0xbfb8aa3b, v{16+i}")
    def pk(op, d, a, b, cc=None, bc=""):
        ops = [("a", a), ("b", b)] + ([("c", cc)] if cc is not None else [])
        txt, sel, selh = [], [], []
        for nm, r in ops:
            if nm in bc:
                txt.append(vr(r & ~1, 2)); sel.append(r & 1); selh.append(r & 1)
            else:
                txt.append(vr(r, 2)); sel.append(0); selh.append(1)
        return f"{op} {vr(d,2)}, {', '.join(txt)} op_sel:[{','.join(map(str,sel))}] op_sel_hi:[{','.join(map(str,selh))}]"
    for j in range(7):
        k(f"""
        s_add_u32 s47, s46, {j}
        s_lshr_b32 s48, s47, 1
        s_lshl_b32 s48, s48, 12
        s_and_b32 s47, s47, 1
        s_lshl_b32 s47, s47, 9
        s_add_u32 s48, s48, s47
        s_add_u32 s48, s48, s45
        s_waitcnt lgkmcnt(0)
        """)
        for i in range(4):
            for h in range(2):
                k(pk("v_pk_fma_f32", A(j,i)+2*h, 20+2*h, 8+i, A(j,i)+2*h, "b"))
                k(pk("v_pk_fma_f32", A(j+7,i)+2*h, 24+2*h, 8+i, A(j+7,i)+2*h, "b"))
        if j < 6: k(f"ds_read_b128 v[20:23], v30 offset:{64*(j+1)}\nds_read_b128 v[24:27], v30 offset:{448+64*(j+1)}")
        for i in range(4):
            for h in range(2): k(pk("v_pk_mul_f32", A(j,i)+2*h, A(j,i)+2*h, 16+i, None, "b"))
        for i in range(4):
            for r in range(4): k(f"v_exp_f32 v{A(j,i)+r}, v{A(j,i)+r}")
        for i in range(4):
            for h in range(2): k(pk("v_pk_fma_f32", A(j,i)+2*h, A(j,i)+2*h, 12+i, 12+i, "bc"))
        for i in range(4):
            for r in range(4): k(f"v_rcp_f32 v{A(j,i)+r}, v{A(j,i)+r}")
        for i in range(4):
            for h in range(2): k(pk("v_pk_mul_f32", A(j,i)+2*h, A(j,i)+2*h, A(j+7,i)+2*h))
        for ip in range(2):
            a, b = A(j, 2 * ip), A(j, 2 * ip + 1)
            k(f"v_cvt_pk_bf16_f32 v{a}, v{a}, v{a+1}\nv_cvt_pk_bf16_f32 v{a+1}, v{a+2}, v{a+3}")
            k(f"v_cvt_pk_bf16_f32 v{a+2}, v{b}, v{b+1}\nv_cvt_pk_bf16_f32 v{a+3}, v{b+2}, v{b+3}")
        for ip in range(2):
            a = A(j, 2 * ip)
            if ip == 1: k("s_nop 0")
            k(f"v_permlane32_swap_b32 v{a}, v{a+2}\nv_permlane32_swap_b32 v{a+1}, v{a+3}")
            k(f"buffer_store_dwordx4 {vr(a,4)}, v29, s[12:15], s48 offen offset:{ip*2048}{SC}")
```

```python
from common import *
def gen_k2(k, boundary, force_fallback=False):
    NS = 4; SLOT = 16384; SIDE = NS * SLOT
    SW = 17 * 1024
    Q, NM, SS, PP, O, LL, SEL, KF, VF = 8, 24, 56, 88, 104, 136, 144, 148, 164
    M32 = "v_mfma_f32_32x32x16_bf16"; M16 = "v_mfma_f32_16x16x32_bf16"
    k(f"""
    s_lshl_b32 s40, s38, 2
    s_lshr_b32 s45, s39, 3
    s_add_u32 s40, s40, s45
    s_and_b32 s41, s39, 7
    v_lshlrev_b32 v4, 4, v1
    s_lshl_b32 s31, s40, 18
    s_lshl_b32 s16, s42, 12
    s_mov_b32 s18, s16
    s_lshl_b32 s45, s40, 6
    s_lshl_b32 s46, s41, 3
    s_add_u32 s45, s45, s46
    s_lshl_b32 s46, s42, 1
    s_add_u32 s45, s45, s46
    s_lshl_b32 s17, s45, 11
    """)
    k.srd(4, PWS, WS_KV, 262144)
    k("s_add_u32 s4, s4, s31\ns_addc_u32 s5, s5, 0")
    k.srd(8, PWS, WS_Q, 4 * MB)
    kv = ["s_mov_b32 m0, s18", f"s_add_u32 s18, s18, {SLOT}"] + \
         [f"buffer_load_dwordx4 v4, s[4:7], s16 offen offset:{i*1024}{SC} lds" for i in range(4)] + \
         [f"s_add_u32 s16, s16, {SLOT}", "s_and_b32 s18, s18, 0xffff"]
    side = ["s_add_u32 m0, s19, s22", f"s_add_u32 s21, s21, {8*F*2}", "buffer_load_dwordx4 v7, s[52:55], s21 offen lds",
            f"s_add_u32 m0, s19, 16384", "s_sub_u32 s20, s20, 1", "buffer_load_dwordx4 v4, s[56:59], s22 offen lds", "s_add_u32 s22, s22, 1024"]
    def idle():
        k(f"""
        s_lshl_b32 s47, s2, 2
        s_add_u32 s47, s47, s42
        s_lshr_b32 s48, s47, 3
        s_and_b32 s49, s47, 7
        s_mul_i32 s21, s49, {128*F*2}
        s_cmp_ge_u32 s48, 56
        s_cselect_b32 s45, 56, 0
        s_cselect_b32 s34, s74, s72
        s_cselect_b32 s35, s75, s73
        s_sub_u32 s45, s48, s45
        s_lshl_b32 s45, s45, 7
        s_add_u32 s21, s21, s45
        s_sub_u32 s21, s21, {8*F*2}
        v_lshrrev_b32 v2, 3, v1
        v_and_b32 v3, 7, v1
        v_mul_u32_u24 v2, {F*2}, v2
        v_lshl_add_u32 v7, v3, 4, v2
        s_mul_i32 s19, s42, {SW}
        s_add_u32 s19, s19, {SIDE}
        s_mul_i32 s30, s47, 7168
        s_mov_b32 s22, 0
        """)
        k.srd(12, PWS, WS_O, 4 * MB)
        k.srd(52, 34, 0, D * F * 2)
        k("s_cmp_ge_u32 s48, 112\ns_cselect_b32 s54, 0, s54")
        k.srd(56, PWD, 0, 7168)
        k("s_add_u32 s56, s56, s30\ns_addc_u32 s57, s57, 0")
        k(f"""
        v_lshrrev_b32 v2, 4, v1
        v_lshrrev_b32 v3, 2, v1
        v_xor_b32 v2, v2, v3
        v_and_b32 v2, 1, v2
        v_mov_b32 v3, 0x3f803f80
        v_cmp_eq_u32 vcc, 0, v2
        v_mov_b32 v5, v4
        v_mov_b32 v6, v4
        v_cndmask_b32 v{SEL}, 0, v3, vcc
        """)
        for r in range(1, 4): k(f"v_mov_b32 v{SEL+r}, v{SEL}")
        for r in list(range(O, O + 32)) + list(range(LL, LL + 8)) + list(range(PP + 8, PP + 16)) + list(range(VF + 8, VF + 16)):
            k(f"v_mov_b32 v{r}, 0")
    boundary(0, idle)
    k.ext(kv)
    for r in range(4): k(f"buffer_load_dwordx4 {vr(Q+4*r,4)}, v4, s[8:11], s17 offen offset:{r*1024}{SC}")
    for s in range(2): k.ext(kv)
    k(f"s_waitcnt vmcnt(8)\ns_barrier")
    k(f"ds_read_b128 {vr(KF,4)}, v5\nds_read_b128 {vr(KF+4,4)}, v5 offset:1024")
    k(f"ds_read_b128 {vr(KF+8,4)}, v5 offset:4096\nds_read_b128 {vr(KF+12,4)}, v5 offset:5120")
    k(f"ds_read_b128 {vr(VF,4)}, v5 offset:2048\nds_read_b128 {vr(VF+4,4)}, v5 offset:3072\ns_waitcnt lgkmcnt(4)")
    for c in range(2):
        k(f"{M32} {vr(SS+16*c,16)}, {vr(KF,4)}, {vr(Q+8*c,4)}, 0\n{M32} {vr(SS+16*c,16)}, {vr(KF+4,4)}, {vr(Q+8*c+4,4)}, {vr(SS+16*c,16)}")
    k("s_nop 11")
    def rowmax(dst, tmp, src):
        k(f"v_max3_f32 v{dst}, v{src}, v{src+1}, v{src+2}")
        for r in range(3, 15, 2): k(f"v_max3_f32 v{dst}, v{dst}, v{src+r}, v{src+r+1}")
        k(f"v_max_f32 v{dst}, v{dst}, v{src+15}\nv_mov_b32 v{tmp}, v{dst}\ns_nop 1\nv_permlane32_swap_b32 v{dst}, v{tmp}\ns_nop 1\nv_max_f32 v{dst}, v{dst}, v{tmp}")
    for c in range(2):
        rowmax(2, 3, SS + 16 * c)
        for r in range(16): k(f"v_sub_f32 v{NM+16*c+r}, 0, v2")
        if c == 0:
            for r in range(16): k(f"v_sub_f32 v{SS+r}, v{SS+r}, v2")
    k(f"v_mov_b32 v{SS+30}, 0\nv_mov_b32 v{SS+31}, 0\ns_mov_b32 s20, 16")
    k.stamp(4)
    k.label("p2loop")
    pos = [int(x) for x in P('POS', "0,4,8,10,14,18").split(",")]
    slots = [[[] for _ in range(6)] for _ in range(8)]
    vextra = [[] for _ in range(8)]
    for u in range(4):
        Kw, Vw = KF + 8 * (u % 2), VF + 8 * (1 - u % 2)
        ko, vo = ((u + 2) % 4) * 4096, ((u + 1) % 4) * 4096 + 2048
        rd = [f"ds_read_b128 {vr(Kw,4)}, v5 offset:{ko}", f"ds_read_b128 {vr(Kw+4,4)}, v5 offset:{ko+1024}",
              f"ds_read_b128 {vr(Vw,4)}, v{6 if u < 3 else 5} offset:{vo}", f"ds_read_b128 {vr(Vw+4,4)}, v{6 if u < 3 else 5} offset:{vo+1024}"]
        for j in range(4): slots[2 * u + 1][j].append(rd[j])
        slots[2 * u][5].append("s_waitcnt lgkmcnt(0)")
    slots[4][3].append("s_waitcnt vmcnt(6)"); slots[4][4].append("s_barrier")
    vextra[4] = [f"v_add_u32 v5, {SLOT}, v5", "v_and_b32 v5, 0xffff, v5"]
    vextra[6] = ["v_mov_b32 v6, v5"]
    free = [(h, j) for h in range(8) for j in range(6) if not slots[h][j]]
    after = [x for x in free if x > (4, 4)]; before = [x for x in free if x < (4, 3)]
    for x, ins in zip(after, kv + ["s_cmp_lg_u32 s20, 0"]): slots[x[0]][x[1]].append(ins)
    assert len(after) >= len(kv) + 1 and len(before) >= len(side)
    for x, ins in zip(before, side): slots[x[0]][x[1]].append(ins)
    for u in range(4):
        par = u % 2
        for c in range(2):
            o = 1 - c; h = 2 * u + c
            Sc, Pc = SS + 16 * c, PP + 8 * c
            Kn = KF + 8 * (par if c == 0 else 1 - par)
            Vp = VF + 8 * (1 - par if c == 0 else par)
            Sn, Pp, Oo, Lo, Qo, No = SS + 16 * o, PP + 8 * o, O + 16 * o, LL + 4 * o, Q + 8 * o, NM + 16 * o
            mf = [f"{M32} {vr(Oo,16)}, {vr(Vp,4)}, {vr(Pp,4)}, {vr(Oo,16)}",
                  f"{M32} {vr(Sn,16)}, {vr(Kn,4)}, {vr(Qo,4)}, {vr(No,16)}",
                  f"{M16} {vr(Lo,4)}, {vr(SEL,4)}, {vr(Pp,4)}, {vr(Lo,4)}",
                  f"{M32} {vr(Sn,16)}, {vr(Kn+4,4)}, {vr(Qo+4,4)}, {vr(Sn,16)}",
                  f"{M32} {vr(Oo,16)}, {vr(Vp+4,4)}, {vr(Pp+4,4)}, {vr(Oo,16)}",
                  f"{M16} {vr(Lo,4)}, {vr(SEL,4)}, {vr(Pp+4,4)}, {vr(Lo,4)}"]
            va = [f"v_cvt_pk_bf16_f32 v{Pp+7}, v{Sn+14}, v{Sn+15}"]
            for i in range(16):
                va.append(f"v_exp_f32 v{Sc+i}, v{Sc+i}")
                if i % 2 == 1 and i >= 3: va.append(f"v_cvt_pk_bf16_f32 v{Pc+(i-3)//2}, v{Sc+i-3}, v{Sc+i-2}")
            va += vextra[h]
            for i, x in enumerate(va):
                if i in pos:
                    j = pos.index(i); k(mf[j]); k.ext(slots[h][j])
                k(x)
    k(f"s_cbranch_scc1 {k.lab('p2loop')}")
    k(f"""
    v_cvt_pk_bf16_f32 v{PP+15}, v{SS+30}, v{SS+31}
    {M32} {vr(O+16,16)}, {vr(VF+8,4)}, {vr(PP+8,4)}, {vr(O+16,16)}
    {M16} {vr(LL+4,4)}, {vr(SEL,4)}, {vr(PP+8,4)}, {vr(LL+4,4)}
    {M32} {vr(O+16,16)}, {vr(VF+12,4)}, {vr(PP+12,4)}, {vr(O+16,16)}
    {M16} {vr(LL+4,4)}, {vr(SEL,4)}, {vr(PP+12,4)}, {vr(LL+4,4)}
    """)
    k(f"""
    v_lshrrev_b32 v2, 2, v1
    v_and_b32 v3, 3, v1
    v_lshlrev_b32 v2, 7, v2
    v_lshl_add_u32 v2, v3, 3, v2
    v_add_u32 v2, s19, v2
    s_waitcnt vmcnt(0) lgkmcnt(0)
    """)
    for r in range(4): k(f"v_mov_b32 v{KF+r}, 0x3f803f80")
    WB = NM
    for gq in range(4):
        for ct in range(4):
            for hf in range(2): k(f"ds_read_b64_tr_b16 {vr(WB+16*gq+4*ct+2*hf,2)}, v2 offset:{gq*4096 + hf*2048 + ct*32}")
        if gq % 2 == 1:
            k("s_waitcnt lgkmcnt(0)")
            for g2 in (gq - 1, gq):
                for ct in range(4):
                    k(f"{M16} {vr(VF+4*ct,4)}, {vr(KF,4)}, {vr(WB+16*g2+4*ct,4)}, {vr(VF+4*ct,4) if g2 else 0}")
    k("s_barrier")
    k.srd(56, PWS, WS_CS, 8 * 2 * F * 4)
    k(f"""
    s_cmp_ge_u32 s48, 112
    s_cselect_b32 s58, 0, s58
    s_mul_i32 s45, s49, {2*F*4}
    s_lshl_b32 s46, s48, 8
    s_add_u32 s45, s45, s46
    v_lshlrev_b32 v2, 2, v1
    s_mov_b64 exec, 0xffff
    """)
    for ct in range(4): k(f"buffer_store_dword v{VF+4*ct}, v2, s[56:59], s45 offen offset:{64*ct}{SC}")
    k(f"""
    s_mov_b64 exec, -1
    v_mul_f32 v2, 0, v{LL}
    v_fmac_f32 v2, 0, v{LL+4}
    """)
    for r in range(32): k(f"v_fmac_f32 v2, 0, v{O+r}")
    k(f"""
    v_cmp_u_f32 vcc, v2, v2
    s_nop 4
    s_cbranch_vcc{'z' if not force_fallback else 'nz'} {k.lab('fin')}
    """)
    k("s_mov_b32 s16, 0\ns_mov_b32 s20, 64\nv_mov_b32 v6, 0xff800000\nv_mov_b32 v7, 0xff800000")
    for r in list(range(O, O + 32)) + list(range(LL, LL + 8)): k(f"v_mov_b32 v{r}, 0")
    k.label("fb")
    k(f"""
    buffer_load_dwordx4 {vr(KF,4)}, v4, s[4:7], s16 offen{SC}
    buffer_load_dwordx4 {vr(KF+4,4)}, v4, s[4:7], s16 offen offset:1024{SC}
    buffer_load_dwordx4 {vr(VF,4)}, v4, s[4:7], s16 offen offset:2048{SC}
    buffer_load_dwordx4 {vr(VF+4,4)}, v4, s[4:7], s16 offen offset:3072{SC}
    s_add_u32 s16, s16, 4096
    s_waitcnt vmcnt(0)
    """)
    for c in range(2):
        Oc, Lc = O + 16 * c, LL + 4 * c
        k(f"""
        {M32} {vr(SS,16)}, {vr(KF,4)}, {vr(Q+8*c,4)}, 0
        {M32} {vr(SS,16)}, {vr(KF+4,4)}, {vr(Q+8*c+4,4)}, {vr(SS,16)}
        s_nop 15
        """)
        rowmax(2, 3, SS)
        k(f"v_max_f32 v2, v2, v{6+c}\nv_sub_f32 v3, v{6+c}, v2\nv_exp_f32 v3, v3\nv_mov_b32 v{6+c}, v2")
        for r in range(16): k(f"v_sub_f32 v{SS+r}, v{SS+r}, v2")
        for r in range(16): k(f"v_exp_f32 v{SS+r}, v{SS+r}")
        for r in list(range(Oc, Oc + 16)) + list(range(Lc, Lc + 4)): k(f"v_mul_f32 v{r}, v{r}, v3")
        for r in range(8): k(f"v_cvt_pk_bf16_f32 v{PP+r}, v{SS+2*r}, v{SS+2*r+1}")
        k(f"""
        s_nop 1
        {M32} {vr(Oc,16)}, {vr(VF,4)}, {vr(PP,4)}, {vr(Oc,16)}
        {M16} {vr(Lc,4)}, {vr(SEL,4)}, {vr(PP,4)}, {vr(Lc,4)}
        {M32} {vr(Oc,16)}, {vr(VF+4,4)}, {vr(PP+4,4)}, {vr(Oc,16)}
        {M16} {vr(Lc,4)}, {vr(SEL,4)}, {vr(PP+4,4)}, {vr(Lc,4)}
        """)
    k(f"""
    s_sub_u32 s20, s20, 1
    s_cmp_lg_u32 s20, 0
    s_nop 15
    s_cbranch_scc1 {k.lab('fb')}
    """)
    k.label("fin")
    k.stamp(5)
    k(f"""
    v_rcp_f32 v2, v{LL}
    v_rcp_f32 v6, v{LL+4}
    s_lshl_b32 s45, s41, 2
    s_add_u32 s45, s45, s42
    s_lshl_b32 s45, s45, 5
    s_add_u32 s45, s45, s40
    s_lshl_b32 s45, s45, 12
    v_and_b32 v3, 15, v1
    v_lshlrev_b32 v3, 4, v3
    v_and_b32 v5, 16, v1
    v_lshl_add_u32 v3, v5, 6, v3
    v_and_b32 v5, 32, v1
    v_lshl_add_u32 v3, v5, 3, v3
    """)
    for c in range(2):
        Oc = O + 16 * c
        for r in range(16): k(f"v_mul_f32 v{Oc+r}, v{Oc+r}, v{2 if c == 0 else 6}")
        for a in range(2):
            d = SS + 8 * c + 4 * a
            k(f"v_cvt_pk_bf16_f32 v{d}, v{Oc+4*a}, v{Oc+4*a+1}\nv_cvt_pk_bf16_f32 v{d+1}, v{Oc+4*a+2}, v{Oc+4*a+3}")
            k(f"v_cvt_pk_bf16_f32 v{d+2}, v{Oc+8+4*a}, v{Oc+8+4*a+1}\nv_cvt_pk_bf16_f32 v{d+3}, v{Oc+8+4*a+2}, v{Oc+8+4*a+3}")
            k(f"buffer_store_dwordx4 {vr(d,4)}, v3, s[12:15], s45 offen offset:{c*2048 + a*512}{SC}")
```

```python
import sys
from common import *
from gemm import gen_k1, gen_k35, gen_k4
from k2 import gen_k2
NAME = "sequential_preLN__softmax_full_mha__glu_gated_glu__prompt_kernel"
out = sys.argv[1] if len(sys.argv) > 1 else "sequential_preLN__softmax_full_mha__glu_gated_glu__prompt.s"
fb = len(sys.argv) > 2 and sys.argv[2] == "fb"
k = K(NAME, 256, 256, 163840, vgpr=256, agpr=236 if PROF else 200, sgpr=102)
nlab = [0]
def poll(k, srd, mask, target):
    nlab[0] += 1; L = k.lab(f"poll{nlab[0]}")
    k(f"""
    s_mov_b64 exec, {mask}
    s_mov_b32 s45, 0x20000
    {L}:
    buffer_load_dword v31, v30, s[{srd}:{srd+3}], 0 offen sc1
    s_sub_u32 s45, s45, 1
    s_cbranch_scc1 {L}x
    s_waitcnt vmcnt(0)
    v_cmp_gt_u32 vcc, {target}, v31
    s_and_b64 vcc, vcc, exec
    s_cbranch_scc1 {L}
    {L}x:
    s_mov_b64 exec, -1
    """)
def make_boundary(sig, wait, target, mask=1, first=False, st=None):
    k(sig)
    def boundary(nyoung, idle):
        nlab[0] += 1; L = k.lab(f"b{nlab[0]}")
        k(f"s_waitcnt vmcnt({nyoung})\ns_barrier\ns_cmp_lg_u32 s42, 0\ns_cbranch_scc1 {L}a")
        if first:
            k(f"v_readfirstlane_b32 s45, v15\nv_mov_b32 v30, 0\ns_cmp_eq_u32 s45, 1\ns_cbranch_scc1 {L}c"); poll(k, 88, 1, 1); k(f"{L}c:")
        k(f"""
        s_lshl_b32 s92, s92, 8
        v_mov_b32 v30, s92
        v_mov_b32 v31, 1
        s_mov_b64 exec, 1
        buffer_atomic_add v31, v30, s[84:87], 0 offen sc1
        s_mov_b64 exec, -1
        {L}a:
        """)
        if st is not None: k.stamp(st)
        idle()
        k(f"s_cmp_lg_u32 s42, 0\ns_cbranch_scc1 {L}b")
        k(wait); poll(k, 84, mask, target)
        k(f"{L}b:\ns_barrier")
    return boundary

k(f"""
s_cmp_ge_u32 s2, 256
s_cbranch_scc1 {k.lab('end')}
s_load_dwordx16 s[64:79], s[0:1], 0
s_load_dwordx4 s[80:83], s[0:1], 64
v_and_b32 v1, 63, v0
v_lshrrev_b32 v2, 6, v0
s_and_b32 s38, s2, 7
v_readfirstlane_b32 s42, v2
s_lshr_b32 s39, s2, 3
""")
k.stamp(0)
k(f"""
v_and_b32 v3, 7, v1
v_lshrrev_b32 v4, 3, v1
v_and_b32 v4, 3, v4
v_lshrrev_b32 v5, 5, v1
v_lshlrev_b32 v6, 11, v3
v_lshl_add_u32 v6, v2, 9, v6
v_lshl_add_u32 v6, v5, 6, v6
v_lshl_add_u32 v6, v4, 3, v6
s_lshl_b32 s16, s2, 14
v_lshlrev_b32 v7, 4, v0
s_mul_i32 s17, s2, 24576
s_lshl_b32 s18, s2, 13
s_waitcnt lgkmcnt(0)
""")
k.srd(4, PX, 0, S * D * 2)
k.srd(84, PWS, WS_CNT, 64 * 256)
k(f"""
s_lshl_b32 s46, s2, 2
s_add_u32 s46, s46, s42
s_cmp_lg_u32 s46, 3
s_cbranch_scc1 {k.lab('noinit')}
v_lshlrev_b32 v8, 8, v1
v_mov_b32 v9, 0
buffer_store_dword v9, v8, s[84:87], 0 offen sc1
{k.lab('noinit')}:
""")
for j in range(4):
    k(f"buffer_load_dwordx2 {vr(16+4*j,2)}, v6, s[4:7], s16 offen offset:{j*128}")
    k(f"buffer_load_dwordx2 {vr(18+4*j,2)}, v6, s[4:7], s16 offen offset:{j*128+32}")
k.srd(8, PWQKV, 0, D * 3 * D * 2)
k.srd(52, PWO, 0, D * D * 2)
for j in range(6): k(f"buffer_load_dwordx4 {vr(96+4*j,4)}, v7, s[8:11], s17 offen\ns_add_u32 s17, s17, 4096")
for j in range(2): k(f"buffer_load_dwordx4 {vr(120+4*j,4)}, v7, s[52:55], s18 offen\ns_add_u32 s18, s18, 4096")
k.srd(88, PDBG, 0, 256)
k.srd(12, PWS, WS_XN, S * D * 2)
k(f"""
v_mov_b32 v8, 0
v_mov_b32 v9, 0
v_mov_b32 v10, 1
s_waitcnt vmcnt(8)
s_cmp_lg_u32 s46, 3
s_cbranch_scc1 {k.lab('noinit2')}
s_mov_b64 exec, 1
buffer_store_dword v10, v9, s[88:91], 0 offen sc1
s_mov_b64 exec, -1
{k.lab('noinit2')}:
""")
for r in range(16):
    k(f"v_lshlrev_b32 v{32+2*r}, 16, v{16+r}\nv_and_b32 v{33+2*r}, 0xffff0000, v{16+r}")
    k(f"v_add_f32 v8, v8, v{32+2*r}\nv_fmac_f32 v9, v{32+2*r}, v{32+2*r}\nv_add_f32 v8, v8, v{33+2*r}\nv_fmac_f32 v9, v{33+2*r}, v{33+2*r}")
SL = 3 * 40960
k(f"""
v_lshlrev_b32 v10, 8, v3
v_lshrrev_b32 v11, 3, v0
v_lshl_add_u32 v11, v11, 3, v10
v_add_u32 v10, {SL}, v10
ds_write_b64 v11, v[8:9] offset:0
""".replace("ds_write_b64 v11, v[8:9] offset:0", f"v_add_u32 v11, {SL}, v11\nds_write_b64 v11, v[8:9]"))
k("s_waitcnt lgkmcnt(0)\ns_barrier")
for j in range(16): k(f"ds_read_b128 {vr(128+4*j,4)}, v10 offset:{16*j}")
k("s_waitcnt lgkmcnt(0)")
k("v_pk_add_f32 v[8:9], v[128:129], v[130:131]")
for j in range(2, 32): k(f"v_pk_add_f32 v[8:9], v[8:9], {vr(128+2*j,2)}")
k(f"""
v_mul_f32 v8, 0x3a800000, v8
v_mul_f32 v9, 0x3a800000, v9
v_fma_f32 v9, -v8, v8, v9
v_max_f32 v9, 0, v9
v_add_f32 v9, 0x3727c5ac, v9
v_rsq_f32 v9, v9
s_lshr_b32 s17, s2, 3
s_lshl_b32 s17, s17, 17
v_mul_f32 v8, v8, v9
s_lshr_b32 s18, s2, 1
s_and_b32 s18, s18, 3
s_lshl_b32 s18, s18, 10
s_add_u32 s17, s17, s18
s_and_b32 s18, s2, 1
s_lshl_b32 s18, s18, 7
s_add_u32 s17, s17, s18
v_lshlrev_b32 v6, 4, v3
v_lshl_add_u32 v6, v4, 8, v6
v_lshl_add_u32 v6, v5, 12, v6
v_lshl_add_u32 v6, v2, 15, v6
""")
for r in range(32): k(f"v_fma_f32 v{32+r}, v{32+r}, v9, -v8")
for r in range(16): k(f"v_cvt_pk_bf16_f32 v{16+r}, v{32+2*r}, v{33+2*r}")
k("v_mov_b32 v14, 0\nbuffer_load_dword v15, v14, s[88:91], 0 offen sc1")
for j in range(4):
    k(f"buffer_store_dwordx4 {vr(16+4*j,4)}, v6, s[12:15], s17 offen{SC}")
    k("s_add_u32 s17, s17, 8192")
k("s_nop 0")
gen_k1(k, make_boundary("s_lshr_b32 s92, s2, 4", "s_lshl_b32 s45, s40, 8\nv_mov_b32 v30, s45", 16, first=True, st=1))
gen_k2(k, make_boundary("s_add_u32 s92, s41, 16", "s_lshr_b32 s45, s40, 1\ns_add_u32 s45, s45, 16\ns_lshl_b32 s45, s45, 8\nv_mov_b32 v30, s45", 16, st=12), fb)
gen_k35(k, make_boundary("s_add_u32 s92, s41, 32", "s_lshr_b32 s45, s40, 2\ns_add_u32 s45, s45, 32\ns_lshl_b32 s45, s45, 8\nv_mov_b32 v30, s45", 32, st=13), 3)
gen_k4(k, make_boundary("s_lshr_b32 s92, s40, 2\ns_add_u32 s92, s92, 40",
       "s_add_u32 s45, s40, 40\nv_add_u32 v30, 32, v1\nv_mov_b32 v31, s45\nv_cmp_eq_u32 vcc, 8, v1\ns_nop 1\nv_cndmask_b32 v30, v30, v31, vcc\nv_lshlrev_b32 v30, 8, v30", 32, mask=0x1ff, st=14))
gen_k35(k, make_boundary("s_add_u32 s92, s40, 48", "s_lshr_b32 s45, s40, 2\ns_add_u32 s45, s45, 48\ns_lshl_b32 s45, s45, 8\nv_mov_b32 v30, s45", 32, st=15), 5)
if PROF:
    k("s_waitcnt vmcnt(0)"); k.stamp(16)
    k.stamp_end(17)
k.label("end")
write_file(out, [k])
```

```python
from common import *
BIAS = 4096
ST = P('ST', '')

class G:
    pass

def gemm_main(k, c, boundary):
    KGS = c.BK // 32; KG = c.K // 32
    PH = KGS // c.SUB
    NS, LA = c.NS, c.LA
    nst = c.K // c.BK
    assert nst % NS == 0 and (NS * PH) % 2 == 0 and LA <= NS
    nA = (c.TM // 64) * KGS
    Wreg = nA * 4096
    L = nA + c.LW
    fr = ar if c.frag_agpr else vr
    acc = (lambda j, i: ar(4 * (j * c.MT + i), 4)) if c.acc_agpr else (lambda j, i: vr(c.vacc + 4 * (j * c.MT + i), 4))
    XF = lambda st, kk, i: c.vfx + ((st * c.SUB + kk) * c.MT + i) * 4
    WF = lambda st, kk, j: c.vfw + ((st * c.SUB + kk) * c.NT + j) * 4
    nWr = 2 if c.wmode == "cb" else 1
    vAd, vWd = 4, 8
    spb = 65536 // c.slot
    nB = (NS + spb - 1) // spb
    araw = getattr(c, 'araw', False)
    nAr = 2 if araw else 1
    vAr = lambda sl: c.vrd + (sl // spb) * (nAr + nWr)
    vWr = lambda sl: vAr(sl) + nAr
    so = lambda sl: (sl % spb) * c.slot
    lg = lambda x: x.bit_length() - 1
    k(f"""
    v_lshrrev_b32 v2, 4, v1
    v_and_b32 v3, 15, v1
    s_and_b32 s40, s38, {c.xm-1}
    s_lshl_b32 s40, s40, {lg(c.tm)}
    s_and_b32 s45, s39, {c.tm-1}
    s_add_u32 s40, s40, s45
    s_lshr_b32 s41, s38, {lg(c.xm)}
    s_lshl_b32 s41, s41, {lg(32//c.tm)}
    s_lshr_b32 s45, s39, {lg(c.tm)}
    s_add_u32 s41, s41, s45
    s_lshr_b32 s43, s42, {lg(c.WN)}
    s_and_b32 s44, s42, {c.WN-1}
    v_lshlrev_b32 v{vAd}, 4, v1
    """)
    wpm = 4 // (c.TM // 64)
    if araw:
        k(f"""
        s_lshl_b32 s45, s40, 7
        s_lshl_b32 s46, s42, 5
        s_add_u32 s45, s45, s46
        s_lshl_b32 s16, s45, 11
        s_lshl_b32 s18, s42, 12
        v_lshrrev_b32 v20, 3, v1
        v_lshrrev_b32 v21, 4, v1
        v_and_b32 v22, 7, v1
        v_xor_b32 v21, v21, v22
        v_lshlrev_b32 v20, 11, v20
        v_lshl_add_u32 v14, v21, 4, v20
        v_add_u32 v14, s16, v14
        s_add_u32 s21, s40, s41
        s_and_b32 s94, s21, {15 - P('ROT', 12)}
        s_and_b32 s21, s21, {P('ROT', 12)}
        s_lshl_b32 s16, s21, 7
        v_xor_b32 v15, 64, v14
        v_add_u32 v15, {16384-1024}, v15
        v_add_u32 v16, {2*(16384-1024)}, v14
        v_add_u32 v17, {2*(16384-1024)}, v15
        v_lshrrev_b32 v20, 1, v3
        v_xor_b32 v20, v20, v2
        v_lshlrev_b32 v20, 4, v20
        v_lshl_add_u32 v20, v3, 7, v20
        s_lshl_b32 s45, s43, 13
        v_add_u32 v{vAr(0)}, s45, v20
        v_xor_b32 v{vAr(0)+1}, 64, v{vAr(0)}
        """)
    else:
        k(f"""
        s_lshr_b32 s45, s42, {lg(wpm)}
        s_lshl_b32 s46, s40, {lg(c.TM//64)}
        s_add_u32 s45, s45, s46
        s_mul_i32 s31, s45, {KG*4096}
        s_and_b32 s46, s42, {wpm-1}
        s_mul_i32 s16, s46, {nA*1024}
        s_mul_i32 s18, s42, {nA*1024}
        """)
        if c.TM == 64: wpart = f"s_lshl_b32 s45, s43, {10 + lg(c.MT)}"
        else: wpart = f"s_lshl_b32 s45, s43, {12 + lg(KGS)}"
        k(f"{wpart}\nv_add_u32 v{vAr(0)}, s45, v{vAd}")
    if c.wmode == "cb":
        RGW = c.BK // 32
        k(f"""
        v_lshrrev_b32 v20, 3, v1
        v_and_b32 v21, 7, v1
        v_and_b32 v22, {2 if c.kperm == 2 else 6}, v20
        v_xor_b32 v21, v21, v22
        v_lshlrev_b32 v21, 4, v21
        v_mul_u32_u24 v20, {c.wstride}, v20
        v_add_u32 v20, v20, v21
        """)
        k(f"""
        s_mul_i32 s17, s42, {RGW*8*c.wstride}
        s_mul_i32 s45, s41, {c.colstep}
        s_add_u32 s17, s17, s45
        s_mul_i32 s19, s42, {c.LW*1024}
        s_add_u32 s19, s19, {Wreg}
        """)
        if araw: k(f"v_add_u32 v20, s17, v20\ns_mul_i32 s17, s21, {c.BK*c.wstride}")
        for i in range(c.LW):
            rg, cb = divmod(i, c.NCB)
            if c.kperm == 2 and rg == 1 and cb == 0: k("v_xor_b32 v20, 64, v20")
            k(f"v_add_u32 v{vWd+i}, {BIAS + rg*8*c.wstride + cb*c.cbstride - (i%4)*1024}, v20")
        rdsetup = f"""
        v_lshrrev_b32 v20, 2, v1
        v_and_b32 v20, 7, v20
        v_lshrrev_b32 v21, 1, v20
        s_lshl_b32 s45, s44, 1
        v_xor_b32 v21, s45, v21
        v_lshlrev_b32 v21, 5, v21
        v_lshlrev_b32 v20, 7, v20
        v_lshrrev_b32 v22, 5, v1
        v_mul_u32_u24 v22, {c.NCB*1024*(2 if c.kperm else 1)}, v22
        v_add_u32 v20, v20, v22
        v_and_b32 v22, 3, v1
        v_lshl_add_u32 v20, v22, 3, v20
        v_add_u32 v20, {Wreg}, v20
        v_add_u32 v{vWr(0)}, v20, v21
        v_xor_b32 v21, 32, v21
        v_add_u32 v{vWr(0)+1}, v20, v21
        """
        if c.kperm == 2:
            rdsetup = f"""
            v_lshrrev_b32 v20, 2, v1
            v_and_b32 v22, 3, v20
            v_lshrrev_b32 v21, 1, v20
            v_and_b32 v21, 3, v21
            s_lshl_b32 s45, s44, 1
            v_xor_b32 v21, s45, v21
            v_lshlrev_b32 v21, 5, v21
            v_lshlrev_b32 v20, 7, v22
            v_mul_u32_u24 v22, {c.NCB*1024}, v2
            v_add_u32 v20, v20, v22
            v_and_b32 v22, 3, v1
            v_lshl_add_u32 v20, v22, 3, v20
            v_add_u32 v20, {Wreg}, v20
            v_add_u32 v{vWr(0)}, v20, v21
            v_xor_b32 v21, 32, v21
            v_add_u32 v{vWr(0)+1}, v20, v21
            """
        def wread(sl, st, kk_s, kk, j, half):
            cb, uu = divmod(j, 2)
            if c.kperm == 2: return f"ds_read_b64_tr_b16 {fr(WF(st,kk,j)+2*half,2)}, v{vWr(sl)+uu} offset:{so(sl)+(4*kk_s*c.NCB+cb)*1024+half*512}"
            return f"ds_read_b64_tr_b16 {fr(WF(st,kk,j)+2*half,2)}, v{vWr(sl)+uu} offset:{so(sl)+((4*kk_s+(1 if c.kperm else 2)*half)*c.NCB+cb)*1024}"
    else:
        k(f"""
        s_and_b32 s45, s42, 1
        s_mul_i32 s45, s45, 192
        v_add_u32 v20, s45, v1
        s_mov_b32 s46, 0x12492493
        """)
        for i in range(4):
            k(f"""
            v_add_u32 v21, {64*i}, v20
            v_mul_hi_u32 v22, v21, s46
            v_mul_u32_u24 v23, 14, v22
            v_sub_u32 v21, v21, v23
            v_mul_u32_u24 v22, {c.wstride}, v22
            v_lshl_add_u32 v22, v21, 4, v22
            v_add_u32 v{vWd+i}, {BIAS - i*1024}, v22
            """)
        k(f"""
        s_mul_i32 s17, s41, 224
        s_lshr_b32 s46, s42, 1
        s_mul_i32 s46, s46, 7168
        s_lshl_b32 s45, s45, 4
        s_add_u32 s19, s45, s46
        s_add_u32 s19, s19, {Wreg}
        """)
        rdsetup = f"""
        v_lshrrev_b32 v20, 2, v1
        v_mul_u32_u24 v20, 224, v20
        v_and_b32 v21, 3, v1
        v_lshl_add_u32 v20, v21, 3, v20
        v_add_u32 v{vWr(0)}, {Wreg}, v20
        """
        def wread(sl, st, kk_s, kk, j, half):
            return f"ds_read_b64_tr_b16 {fr(WF(st,kk,j)+2*half,2)}, v{vWr(sl)} offset:{so(sl) + half*16*224 + (j%7)*32 + (j//7)*7168}"
    def xread(sl, st, kk_s, kk, i):
        if araw: return f"ds_read_b128 {fr(XF(st,kk,i),4)}, v{vAr(sl)+kk_s} offset:{so(sl)+i*2048}"
        return f"ds_read_b128 {fr(XF(st,kk,i),4)}, v{vAr(sl)} offset:{so(sl)+(kk_s*4+i)*1024}"
    def reads(sl, st, ph):
        out = []
        for kk in range(c.SUB):
            kk_s = ph * c.SUB + kk
            out += [xread(sl, st, kk_s, kk, i) for i in range(c.MT)]
            for j in range(c.NT): out += [wread(sl, st, kk_s, kk, j, 0), wread(sl, st, kk_s, kk, j, 1)]
        return out
    def dmaA(sl):
        if araw:
            return [f"s_add_u32 m0, s18, {sl*c.slot}", f"s_add_u32 s16, s16, 128\ns_and_b32 s16, s16, 2047"] + \
                   [f"buffer_load_dwordx4 v{14+i}, s[4:7], s16 offen offset:{i*1024} lds" for i in range(4)]
        return [f"s_add_u32 m0, s18, {sl*c.slot}", f"s_add_u32 s16, s16, {KGS*4096}"] + \
               [f"buffer_load_dwordx4 v{vAd}, s[4:7], s16 offen offset:{i*1024}{SC} lds" for i in range(nA)]
    def dmaW(sl):
        o = []
        for i in range(c.LW):
            if i % 4 == 0:
                o += [f"s_add_u32 m0, s19, {sl*c.slot + i*1024}", "s_nop 0" if i else f"s_add_u32 s17, s17, {c.BK*c.wstride}"]
                if araw and i == 0: o += [f"s_cmp_eq_u32 s17, {c.K*c.wstride}\ns_cselect_b32 s17, 0, s17"]
            o += [f"buffer_load_dwordx4 v{vWd+i}, s[8:11], s17 offen offset:{(i%4)*1024} lds"]
        return o
    def dma(sl): return dmaA(sl) + dmaW(sl)
    k(f"s_sub_u32 s17, s17, {c.BK*c.wstride}\ns_sub_u32 s16, s16, {128 if araw else KGS*4096}")
    c.srds(k)
    if not araw: k(f"s_add_u32 s4, s4, s31\ns_addc_u32 s5, s5, 0\ns_mov_b32 s6, {KG*4096}")
    def split(sl):
        return (dmaA(sl), dmaW(sl)) if PH == 2 else (dma(sl), [])
    nWpre = LA - 1 if PH == 2 else LA
    def idle():
        for s in range(nWpre): k.ext(dmaW(s))
        k(rdsetup)
        for b in range(1, nB):
            for r in range(nAr + nWr): k(f"v_add_u32 v{c.vrd+b*(nAr+nWr)+r}, {b*spb*c.slot}, v{c.vrd+r}")
        for j in range(c.NT):
            for i in range(c.MT):
                for r in range(4):
                    k(f"v_accvgpr_write_b32 a{4*(j*c.MT+i)+r}, 0" if c.acc_agpr else f"v_mov_b32 v{c.vacc+4*(j*c.MT+i)+r}, 0")
        c.pre0(k)
    if araw:
        nWpre = 0
        for s in range(LA):
            k.ext(dma(s) if s < LA - 1 else dmaA(s))
            if s == P('IDL', 0): idle()
            if s == P('WRM', 0) and P('PAD', 12) < 999:
                k("s_mov_b64 exec, 0")
                for w in range(3): k(f"s_cmp_eq_u32 s42, {w}\ns_cbranch_scc1 {k.lab(f'pad{w}_0')}")
                k(f"s_branch {k.lab('pad3_0')}\n{k.lab('padret')}:\ns_mov_b64 exec, -1")
        if not P('ITS', 0): k.stamp(1)
        k(f"s_waitcnt vmcnt({(LA-2)*L + nA})")
        c.pre(k)
        k("s_barrier")
    else:
        boundary(0, idle)
        for s in range(LA):
            if s == LA - 1: c.pre(k)
            k.ext(dmaA(s))
        k(f"s_waitcnt vmcnt({nA + c.pre_vm})\ns_barrier")
    k.stamp(c.st)
    k.ext(reads(0, 0, 0))
    k(f"s_mov_b32 s20, {nst // NS}\ns_waitcnt lgkmcnt(0)")
    nloop = len(k.L); ctx = {}
    k.label(c.name + "loop")
    if P('ITS', 0) and c.name == P('ITP', 'p1'):
        k(f"s_cmp_eq_u32 s20, {P('ITS', 0)}\ns_cbranch_scc0 {k.lab('its')}"); k.stamp(1); k.label("its")
    for p in range(NS * PH):
        sl, ph = divmod(p, PH)
        st = p % 2
        lastph = ph == PH - 1
        mf = []
        for kk in range(c.SUB):
            for j in range(c.NT):
                for i in range(c.MT):
                    a, b = fr(WF(st, kk, j), 4), fr(XF(st, kk, i), 4)
                    if c.swap(j): a, b = b, a
                    mf.append(f"v_mfma_f32_16x16x32_bf16 {acc(j,i)}, {a}, {b}, {acc(j,i)}")
        if lastph:
            rd = reads((sl + 1) % NS, 1 - st, 0)
            k(mf[0]); mf = mf[1:]
            if araw:
                alts = c.alt.get(sl, [])
                for cond, ex in alts: k(f"{cond}\ns_cbranch_scc1 {k.lab(f'alt{sl}{ex}')}")
                k(f"s_waitcnt vmcnt({(LA-2)*L})")
                for cond, ex in alts: k(f"{k.lab(f'alt{sl}{ex}')}:\ns_waitcnt vmcnt({(LA-2)*L + ex})")
                k("s_barrier")
                for cond, nm in c.hooks[sl]:
                    k(mf[0]); mf = mf[1:]
                    if nm in c.merged: ctx[nm] = (sl, mf, rd, split((sl + LA) % NS)[0])
                    k(f"{cond}\ns_cbranch_scc1 {k.lab(nm)}\n{k.lab(f'{nm}r{sl}')}:")
                if sl == 1: k(mf[0]); mf = mf[1:]
                if sl == 1: k("s_cmp_eq_u32 s20, 1\ns_cselect_b32 s6, 0, s6\ns_cselect_b32 s10, 0, s10")
            else: k(f"s_waitcnt vmcnt({(LA-2)*L})\ns_barrier")
            fill = merge(rd, split((sl + LA) % NS)[0])
        else:
            rd = reads(sl, 1 - st, ph + 1)
            p2 = split((sl + LA - 1) % NS)[1]
            fill = merge(rd, p2) if p2 else rd
        body = interleave(mf, fill, span=c.span)
        if p == NS * PH - 1:
            body.insert(len(body) - 2, "s_sub_u32 s20, s20, 1"); body.insert(len(body) - 1, "s_cmp_lg_u32 s20, 0")
        k.ext(body)
        if araw and lastph: k.label(f"phend{sl}")
        k("s_waitcnt lgkmcnt(0)")
    if araw:
        looptxt = k.L[nloop:]; del k.L[nloop:]
        k(f"s_branch {k.lab(c.name + 'loop')}")
        for w, chain in enumerate(c.chains):
            n0 = len(k.L)
            for nm, body, ret in chain:
                k.label(nm)
                if nm in ctx:
                    sl, mfr, rd, dm = ctx[nm]
                    ex = body(k, XF, WF)
                    if nm == 'red2': rd = []
                    if nm in ('red1', 'red2'): dm = []
                    k.ext(interleave(mfr, merge(*[x for x in (rd, dm, ex) if x]), span=0.95))
                    if sl == NS - 1: k("s_sub_u32 s20, s20, 1\ns_cmp_lg_u32 s20, 0")
                    k(f"s_branch {k.lab(f'phend{sl}')}")
                else:
                    body(k, XF, WF); k(ret)
            txt = k.L[n0:]; del k.L[n0:]
            step = P('PAD', 12); np_ = (len(txt) + step - 1) // step
            for q in range(np_):
                if step < 999: k(f"{k.lab(f'pad{w}_{q}')}:\ns_cbranch_execz {k.lab(f'pad{w}_{q+1}' if q + 1 < np_ else 'padret')}")
                k.L += txt[q*step:(q+1)*step]
        k.L += looptxt
    k(f"s_cbranch_scc1 {k.lab(c.name + 'loop')}")
    k("s_waitcnt vmcnt(0)\ns_barrier\ns_nop 5")
    k.stamp(c.st + 1)

def cvt_pair(k, dst, a, b):
    k(f"v_cvt_pk_bf16_f32 v{dst}, v{a}, v{a+1}\nv_cvt_pk_bf16_f32 v{dst+1}, v{a+2}, v{a+3}")
    k(f"v_cvt_pk_bf16_f32 v{dst+2}, v{b}, v{b+1}\nv_cvt_pk_bf16_f32 v{dst+3}, v{b+2}, v{b+3}")

def head(k, n):
    k(f"s_cmp_ge_u32 s2, {n}\ns_cbranch_scc1 {k.lab('end')}")

def pk(op, d, a, b, cc=None, bc=""):
    ops = [("a", a), ("b", b)] + ([("c", cc)] if cc is not None else [])
    txt, sel, selh = [], [], []
    for nm, r in ops:
        if nm in bc:
            txt.append(vr(r & ~1, 2)); sel.append(r & 1); selh.append(r & 1)
        else:
            txt.append(vr(r, 2)); sel.append(0); selh.append(1)
    return f"{op} {vr(d,2)}, {', '.join(txt)} op_sel:[{','.join(map(str,sel))}] op_sel_hi:[{','.join(map(str,selh))}]"

def gen_k1(k, poll):
    c = G(); c.name, c.st, c.kperm, c.araw = 'p1', 2, 2, True
    c.K, c.TM, c.BK, c.NS, c.SUB, c.MT, c.NT, c.WN = 1024, 128, 64, 4, 1, 4, 6, 2
    c.LA, c.vrd, c.frag_agpr = 3, 208, False
    c.wmode, c.NCB, c.LW, c.wstride, c.cbstride, c.colstep = "cb", 3, 6, 6144, 2048, 128
    c.slot, c.xm, c.tm = 40960, 2, 8
    c.acc_agpr, c.vacc, c.vfx, c.vfw = False, 32, 128, 160
    c.swap = lambda j: j >= 4
    c.span, c.cutg = P('SP1', 0.85), 0
    def srds(k):
        k("s_waitcnt lgkmcnt(0)")
        k.srd(4, PX, 0, S * D * 2)
        k.srd(8, PWQKV, -BIAS, D * 3 * D * 2 + BIAS)
        k.srd(84, PWS, WS_CNT, 128 * 256)
        k(f"""
        s_lshl_b32 s47, s2, 2
        s_add_u32 s47, s47, s42
        s_cmp_lg_u32 s47, 3
        s_cbranch_scc1 {k.lab('noinit')}
        v_lshlrev_b32 v20, 8, v1
        v_mov_b32 v21, 0
        s_mov_b32 s45, 16384
        buffer_store_dword v21, v20, s[84:87], 0 offen sc1
        buffer_store_dword v21, v20, s[84:87], s45 offen sc1
        {k.lab('noinit')}:
        """)
    c.srds = srds
    def pre0(k):
        k.srd(12, PWS, WS_Q, 12 * MB)
        k.srd(88, PDBG, 0, 256)
        k.srd(52, PWS, WS_XN, 16 * 16384)
        k.srd(56, PWS, WS_XN + MB, 16 * 16384)
        k.srd(60, PWO, 0, D * D * 2)
        for r in range(4): k(f"v_mov_b32 v{20+r}, 0x3f803f80")
        k("v_and_b32 v24, 3, v1")
        for q in range(3): k(f"v_cmp_eq_u32 {sr(22+2*q,2)}, {q+1}, v2\nv_cmp_eq_u32 {sr(28+2*q,2)}, {q+1}, v24")
        k(f"""
        v_and_b32 v24, 31, v1
        v_lshrrev_b32 v25, 5, v1
        v_lshlrev_b32 v24, 2, v24
        v_lshl_add_u32 v24, v25, 12, v24
        v_lshlrev_b32 v25, 4, v3
        s_lshl_b32 s48, s40, 14
        s_lshl_b32 s45, s43, 13
        s_lshl_b32 s50, s41, 8
        s_lshl_b32 s46, s44, 7
        s_add_u32 s48, s48, s45
        s_add_u32 s46, s46, s50
        s_add_u32 s48, s48, s46
        s_lshl_b32 s49, s41, 14
        s_lshl_b32 s51, s40, 10
        s_lshl_b32 s45, s42, 8
        s_add_u32 s49, s49, s51
        s_add_u32 s49, s49, s45
        v_lshl_add_u32 v28, v2, 12, v25
        s_lshl_b32 s45, s42, 16
        s_add_u32 s50, s50, s45
        s_add_u32 s51, s51, s45
        v_bfe_u32 v26, v0, 5, 2
        v_lshl_add_u32 v27, v26, 8, v25
        v_and_b32 v26, 1, v2
        v_lshl_add_u32 v27, v26, 3, v27
        v_add_u32 v27, {2 * c.slot + 16384}, v27
        v_mov_b32 v30, 0
        v_mov_b32 v31, 1
        s_sub_u32 s45, s41, s40
        s_add_u32 s45, s45, 64
        v_and_b32 v19, 1, v1
        v_mul_u32_u24 v19, s45, v19
        v_add_lshl_u32 v19, v19, s40, 8
        v_and_b32 v18, 0xc0, v0
        v_lshlrev_b32 v18, 2, v18
        s_cmp_eq_u32 s42, 0
        s_cselect_b32 s93, 3, 2
        s_mov_b32 s34, 0x00f0000f
        s_mov_b32 s35, 0xf0000f00
        """)
    c.pre0 = pre0
    c.pre = lambda k: k(f"""
        s_cmp_lg_u32 s47, 3
        s_cbranch_scc1 {k.lab('noinit2')}
        s_mov_b64 exec, 1
        buffer_store_dword v31, v30, s[88:91], 0 offen sc1
        s_mov_b64 exec, -1
        {k.lab('noinit2')}:
        """)
    EX = 2 * c.slot + 16384
    def sums(k, XF, WF):
        for st in range(2):
            cc = lambda a: ar(a, 4) if st else "0"
            for j in range(6): k(f"v_mfma_f32_16x16x32_bf16 {ar(4*j,4)}, v[20:23], {vr(WF(st,0,j),4)}, {cc(4*j)}")
            for i in range(4):
                x = vr(XF(st, 0, i), 4)
                k(f"v_mfma_f32_16x16x32_bf16 {ar(24+4*i,4)}, v[20:23], {x}, {cc(24+4*i)}")
                k(f"v_mfma_f32_16x16x32_bf16 {ar(40+4*i,4)}, {x}, {x}, {cc(40+4*i)}")
        k("s_mov_b32 s45, s94\ns_mov_b32 s94, 7")
        for sl in range(3): k(f"s_cmp_eq_u32 s45, {sl}\ns_cbranch_scc1 {k.lab(f'sumsr{sl}')}")
    def publish(k, XF, WF):
        e = k.lab('pub')
        o = [f"v_accvgpr_read_b32 v{224+j}, a{4*j}" for j in range(6)]
        t = f"s_cmp_eq_u32 s44, 0\ns_cbranch_scc1 {e}a\n"
        for wn in (1, 0):
            for q in range(2):
                t += f"v_accvgpr_read_b32 v{232+2*q}, a{24+4*(2*wn+q)}\nv_accvgpr_read_b32 v{233+2*q}, a{40+4*(2*wn+q)}\n"
                for r in range(1, 4): t += f"v_accvgpr_read_b32 v{236+4*q+r}, a{40+4*(2*wn+q)+r}\n"
            t += f"s_branch {e}b\n{e}a:\n" if wn else f"{e}b:"
        o += [t, "s_cmp_eq_u32 s43, 0\ns_cselect_b64 vcc, 0, -1", "v_cndmask_b32 v228, v228, v229, s[22:23]"]
        for q in range(3):
            o += [f"v_cndmask_b32 v224, v224, v{225+q}, {sr(22+2*q,2)}", f"v_cndmask_b32 v233, v233, v{237+q}, {sr(28+2*q,2)}",
                  f"v_cndmask_b32 v235, v235, v{241+q}, {sr(28+2*q,2)}"]
        return o + ["v_cndmask_b32 v224, v224, v228, vcc", "s_lshl_b32 s45, s2, 13", "v_lshlrev_b32 v26, 4, v0",
            "buffer_store_dword v224, v24, s[56:59], s48 offen sc1",
            "s_mov_b64 exec, s[34:35]\nbuffer_store_dwordx4 v[232:235], v25, s[52:55], s49 offen sc1\ns_mov_b64 exec, -1\ns_nop 1",
            "buffer_load_dword v29, v18, s[88:91], 0 offen sc1", "buffer_load_dwordx4 a[100:103], v26, s[60:63], s45 offen",
            "s_add_u32 s45, s45, 4096", "buffer_load_dwordx4 a[104:107], v26, s[60:63], s45 offen"]
    def signal(k, XF, WF):
        k(f"s_cmp_eq_u32 s20, 2\ns_cbranch_scc1 {k.lab('look')}")
        k(f"v_readfirstlane_b32 s45, v29\ns_cmp_eq_u32 s45, 1\ns_cbranch_scc1 {k.lab('sigi')}")
        poll(k, 88, 1, 1)
        k(f"""
        {k.lab('sigi')}:
        v_mov_b32 v31, 1
        s_mov_b64 exec, 3
        buffer_atomic_add v31, v19, s[84:87], 0 offen sc1
        s_mov_b64 exec, -1
        """)
    def look(k, XF, WF): k("v_mov_b32 v30, v19\nbuffer_load_dword v18, v19, s[84:87], 0 offen sc1")
    def fetch(k, XF, WF):
        k(f"v_cmp_gt_u32 vcc, 16, v18\ns_and_b64 vcc, vcc, exec\ns_cbranch_scc0 {k.lab('feg')}")
        poll(k, 84, 3, 16)
        k(f"{k.lab('feg')}:")
        o = []
        for j in range(4):
            o += [f"buffer_load_dwordx4 {vr(224+4*j,4)}, v4, s[52:55], s51 offen sc1", "s_add_u32 s51, s51, 16384",
                  f"buffer_load_dwordx4 {vr(240+4*j,4)}, v28, s[56:59], s50 offen sc1", "s_add_u32 s50, s50, 16384"]
        return o
    def red1(k, XF, WF):
        o = [pk("v_pk_add_f32", b+j, b+j, b+j+h) for h in (8, 4) for b in (224, 240) for j in range(0, h, 2)]
        return o + ["v_lshlrev_b32 v26, 4, v0", f"v_add_u32 v26, {EX}, v26", "ds_write_b128 v26, v[224:227] offset:2048", "ds_write_b128 v26, v[240:243] offset:6144",
                    "v_lshlrev_b32 v20, 2, v0", "v_and_b32 v21, 0x1fc, v20", f"v_add_u32 v20, {EX}, v20", f"v_add_u32 v21, {EX}, v21"]
    def red2(k, XF, WF):
        k("ds_read2st64_b64 v[224:227], v27 offset0:4 offset1:6\nds_read2st64_b64 v[228:231], v27 offset0:8 offset1:10")
        k("ds_read2st64_b32 v[240:241], v20 offset0:24 offset1:28\nds_read2st64_b32 v[242:243], v20 offset0:32 offset1:36")
        return f"""s_lshl_b32 s45, s44, 7
        s_lshl_b32 s46, s43, 8
        s_add_u32 s45, s45, {EX}
        s_add_u32 s46, s46, {EX}
        v_lshl_add_u32 v22, v2, 4, s45
        v_lshl_add_u32 v23, v3, 2, s45
        v_lshl_add_u32 v24, v3, 2, s46
        v_lshl_add_u32 v25, v2, 4, s46
        s_waitcnt lgkmcnt(0)
        {pk("v_pk_add_f32", 224, 224, 226)}
        {pk("v_pk_add_f32", 228, 228, 230)}
        {pk("v_pk_add_f32", 240, 240, 242)}
        {pk("v_pk_add_f32", 224, 224, 228)}
        v_add_f32 v240, v240, v241
        v_mul_f32 v224, 0xba800000, v224
        v_mul_f32 v225, 0x3a800000, v225
        ds_write_b32 v20, v240
        v_fma_f32 v225, -v224, v224, v225
        v_max_f32 v225, 0, v225
        v_add_f32 v225, 0x3727c5ac, v225
        v_rsq_f32 v225, v225
        s_nop 0
        ds_write2st64_b32 v21, v224, v225 offset0:4 offset1:6""".split("\n")
    c.merged = ("publish", "fetch", "red1", "red2")
    it = lambda n: f"s_cmp_eq_u32 s20, {n}"
    c.hooks = {sl: [(f"s_cmp_eq_u32 s94, {sl}", "sums")] for sl in range(4)}
    c.hooks[0] += [(it(3), "publish"), (it(1), "fetch")]
    c.hooks[2] += [(it('s93'), "signal"), (it(1), "red1")]
    c.hooks[3] += [(it(1), "red2")]
    br = lambda n: f"s_branch {k.lab(n)}"
    c.chains = [[("sums", sums, br("sumsr3")), ("red2", red2, br("red2r3"))], [("publish", publish, br("publishr0"))],
                [("signal", signal, br("signalr2")), ("look", look, br("signalr2")), ("fetch", fetch, br("fetchr0"))],
                [("red1", red1, br("red1r2"))]]
    c.alt = {1: [(it(3), 5), (it(1), 8)], 3: [(it('s93') + "\ns_cselect_b32 s93, 2, s93", 1)]}
    gemm_main(k, c, None)
    A = lambda j, i: c.vacc + 4 * (j * c.MT + i)
    CSQ, TS, CSV, TV = 128, 144, 152, 160
    for j in range(4): k(f"ds_read_b128 {vr(CSQ+4*j,4)}, v22 offset:{(j//2)*256 + (j%2)*64}")
    for i in range(4): k(f"ds_read_b32 v{TS+i}, v24 offset:{1024+64*i}\nds_read_b32 v{TS+4+i}, v24 offset:{1536+64*i}")
    k("s_waitcnt lgkmcnt(0)")
    for jd in range(2): k(f"ds_read_b32 v{CSV+jd}, v23 offset:{512+64*jd}")
    for i in range(4): k(f"ds_read_b128 {vr(TV+8*i,4)}, v25 offset:{1024+64*i}\nds_read_b128 {vr(TV+8*i+4,4)}, v25 offset:{1536+64*i}")
    for i in range(4): k(f"v_mul_f32 v{192+i}, 0x3e8293ee, v{TS+4+i}")
    for j in (2, 3, 0, 1):
        for i in range(4):
            for h in range(2): k(pk("v_pk_fma_f32", A(j,i)+2*h, CSQ+4*j+2*h, TS+i, A(j,i)+2*h, "b"))
        for i in range(4):
            for h in range(2): k(pk("v_pk_mul_f32", A(j,i)+2*h, A(j,i)+2*h, (192 if j < 2 else TS+4)+i, None, "b"))
    k("s_waitcnt lgkmcnt(0)")
    for jd in range(2):
        for i in range(4):
            for h in range(2): k(pk("v_pk_fma_f32", A(4+jd,i)+2*h, TV+8*i+2*h, CSV+jd, A(4+jd,i)+2*h, "b"))
        for i in range(4):
            for h in range(2): k(pk("v_pk_mul_f32", A(4+jd,i)+2*h, A(4+jd,i)+2*h, TV+8*i+4+2*h))
    k(f"""
    s_lshl_b32 s45, s41, 1
    s_add_u32 s45, s45, s44
    s_lshl_b32 s46, s40, 2
    s_lshl_b32 s47, s43, 1
    s_add_u32 s46, s46, s47
    s_lshl_b32 s45, s45, 6
    s_add_u32 s45, s45, s46
    s_lshl_b32 s46, s45, 11
    s_lshl_b32 s47, s45, 12
    s_add_u32 s47, s47, {WS_KV - WS_Q}
    s_mov_b32 s48, 0x3e8293ee
    """)
    k("""
    v_lshlrev_b32 v10, 9, v2
    v_lshl_add_u32 v11, v3, 4, v10
    v_and_b32 v12, 7, v3
    v_lshlrev_b32 v12, 4, v12
    v_and_b32 v13, 8, v3
    v_lshl_add_u32 v12, v13, 5, v12
    v_add_u32 v12, v12, v10
    """)
    for i in range(4):
        cvt_pair(k, 128 + 4 * i, A(0, i), A(1, i))
        k(f"buffer_store_dwordx4 {vr(128+4*i,4)}, v11, s[12:15], s46 offen offset:{(i//2)*2048 + (i%2)*256}{SC}")
    k("s_add_u32 s49, s47, 4096")
    for i in range(4):
        cvt_pair(k, 144 + 4 * i, A(2, i), A(3, i))
        k(f"buffer_store_dwordx4 {vr(144+4*i,4)}, v12, s[12:15], s{47 if i < 2 else 49} offen offset:{(i%2)*128}{SC}")
    for jd in range(2):
        for ii in range(2):
            cvt_pair(k, 160 + 4 * (2 * jd + ii), A(4 + jd, 2 * ii), A(4 + jd, 2 * ii + 1))
            k(f"buffer_store_dwordx4 {vr(160+4*(2*jd+ii),4)}, v11, s[12:15], s{47 if ii == 0 else 49} offen offset:{2048 + jd*256}{SC}")

def gen_k35(k, boundary, which):
    c = G(); c.name, c.st, c.kperm = f'p{which}', 6 if which == 3 else 10, which == 5
    c.K = 1024 if which == 3 else F
    c.TM, c.BK, c.NS, c.SUB, c.MT, c.NT, c.WN = 64, 64, 4, 2, 2, 4, 2
    c.LA, c.vrd, c.frag_agpr = P('LA5', 4), 24, False
    c.wmode, c.NCB, c.LW, c.wstride, c.cbstride, c.colstep = "cb", 2, 4, 2048, 128, 256
    c.slot, c.xm, c.tm = 24576, 4, 8
    c.acc_agpr, c.vacc, c.vfx, c.vfw = False, 32, 64, 96
    c.swap = lambda j: False
    c.span, c.cutg = P('SP5', 0.8), 1
    c.pre_vm = 0
    def srds(k):
        k.srd(4, PWS, WS_O if which == 3 else WS_ACT, S * c.K * 2)
        k.srd(8, PWO if which == 3 else PWD, -BIAS, c.K * D * 2 + BIAS)
        k.srd(12, PWS, WS_H, S * D * 2)
        k.srd(52, PX if which == 3 else POUT, 0, S * D * 2)
        if which == 3: k.srd(56, PWS, WS_ST, S * 128)
    c.srds = srds
    R = 160
    def pre(k):
        k(f"""
        s_lshl_b32 s45, s40, 6
        s_lshl_b32 s46, s43, 5
        s_add_u32 s45, s45, s46
        v_add_u32 v17, s45, v3
        v_lshlrev_b32 v16, 11, v17
        s_lshl_b32 s45, s41, 8
        s_lshl_b32 s46, s44, 6
        s_add_u32 s45, s45, s46
        v_and_b32 v18, 1, v2
        v_lshl_add_u32 v16, v18, 5, v16
        v_lshrrev_b32 v18, 1, v2
        v_lshl_add_u32 v16, v18, 4, v16
        v_add_u32 v16, s45, v16
        s_lshl_b32 s45, s40, 5
        s_lshl_b32 s46, s41, 2
        s_add_u32 s45, s45, s46
        s_add_u32 s45, s45, s44
        s_lshl_b32 s45, s45, 12
        s_lshl_b32 s46, s43, 11
        s_add_u32 s50, s45, s46
        s_add_u32 s51, s50, 8192
        s_mov_b32 s49, 32768
        """)
        for cb in range(2):
            for i in range(2):
                r = R + 4 * (cb * 2 + i)
                if which == 3:
                    so = "s49" if i else "0"
                    k(f"buffer_load_dwordx4 {vr(r,4)}, v16, s[52:55], {so} offen offset:{cb*128}")
                else:
                    for q in range(4): k(f"v_accvgpr_read_b32 v{r+q}, a{184+4*(cb*2+i)+q}")
    c.pre0 = pre; c.pre = lambda k: None
    gemm_main(k, c, boundary)
    A = lambda j, i: c.vacc + 4 * (j * c.MT + i)
    if which == 3:
        for i in range(2): k(f"v_mov_b32 v{20+2*i}, 0\nv_mov_b32 v{21+2*i}, 0")
        for q in range(4): k(f"v_permlane16_swap_b32 v{R+4*q}, v{R+4*q+2}\nv_permlane16_swap_b32 v{R+4*q+1}, v{R+4*q+3}")
    for cb in range(2):
        for i in range(2):
            r = R + 4 * (cb * 2 + i)
            for hf in range(2):
                a = A(2 * cb + hf, i)
                for d in range(2):
                    k(f"v_lshlrev_b32 v18, 16, v{r+2*hf+d}\nv_and_b32 v19, 0xffff0000, v{r+2*hf+d}")
                    k(f"v_add_f32 v{a+2*d}, v{a+2*d}, v18\nv_add_f32 v{a+2*d+1}, v{a+2*d+1}, v19")
            o = 64 + 4 * (cb * 2 + i)
            cvt_pair(k, o, A(2 * cb, i), A(2 * cb + 1, i))
            if which == 3:
                k(f"buffer_store_dwordx4 {vr(o,4)}, v4, s[12:15], s{50+cb} offen offset:{i*1024}{SC}")
                for q in range(4): k(f"v_accvgpr_write_b32 a{184+4*(cb*2+i)+q}, v{o+q}")
                for d in range(4):
                    k(f"v_lshlrev_b32 v18, 16, v{o+d}\nv_and_b32 v19, 0xffff0000, v{o+d}")
                    k(f"v_add_f32 v{20+2*i}, v{20+2*i}, v18\nv_fmac_f32 v{21+2*i}, v18, v18")
                    k(f"v_add_f32 v{20+2*i}, v{20+2*i}, v19\nv_fmac_f32 v{21+2*i}, v19, v19")
            else:
                so = "s49" if i else "0"
                k(f"s_nop 1\nv_permlane16_swap_b32 v{o}, v{o+2}\nv_permlane16_swap_b32 v{o+1}, v{o+3}")
                k(f"buffer_store_dwordx4 {vr(o,4)}, v16, s[52:55], {so} offen offset:{cb*128}")
    if which == 3:
        for op in ("v_permlane16_swap_b32", "v_permlane32_swap_b32"):
            for r in range(4): k(f"v_mov_b32 v{24+r}, v{20+r}")
            k("s_nop 1")
            for r in range(4): k(f"{op} v{20+r}, v{24+r}")
            k("s_nop 1")
            for r in range(4): k(f"v_add_f32 v{20+r}, v{20+r}, v{24+r}")
        k(f"""
        v_lshlrev_b32 v17, 3, v3
        s_lshl_b32 s45, s40, 13
        s_lshl_b32 s46, s41, 10
        s_add_u32 s45, s45, s46
        s_lshl_b32 s46, s44, 9
        s_add_u32 s45, s45, s46
        s_lshl_b32 s46, s43, 8
        s_add_u32 s45, s45, s46
        s_mov_b64 exec, 0xffff
        buffer_store_dwordx2 v[20:21], v17, s[56:59], s45 offen{SC}
        buffer_store_dwordx2 v[22:23], v17, s[56:59], s45 offen offset:128{SC}
        s_mov_b64 exec, -1
        """)

def gen_k4(k, boundary):
    c = G(); c.name, c.st = 'p4', 8
    c.K, c.TM, c.BK, c.NS, c.SUB, c.MT, c.NT, c.WN = 1024, 256, 32, 4, 1, 4, 14, 1
    c.LA, c.vrd, c.frag_agpr = P('LA4', 3), 12, True
    c.wmode, c.LW, c.wstride = "gu", 4, F * 2
    c.slot, c.xm, c.tm = 30720, 2, 4
    c.acc_agpr, c.vacc, c.vfx, c.vfw = False, 32, 0, 32
    c.swap = lambda j: False
    c.span, c.cutg, c.pre_vm = P('SP4', 0.85), 0, 24
    XL = c.slot * c.NS
    def srds(k):
        k("s_cmp_ge_u32 s42, 2\ns_cselect_b32 s34, s74, s72\ns_cselect_b32 s35, s75, s73")
        k.srd(4, PWS, WS_H, S * D * 2)
        k.srd(8, 34, -BIAS, D * F * 2 + BIAS)
        k.srd(12, PWS, WS_ACT, S * F * 2)
        k.srd(52, PWS, WS_ST, S * 128)
        k.srd(56, PWS, WS_CS, 8 * 2 * F * 4)
    c.srds = srds
    def pre(k):
        k(f"""
        s_lshl_b32 s45, s40, 2
        s_add_u32 s45, s45, s42
        s_lshl_b32 s45, s45, 13
        s_add_u32 s47, s45, 4096
        v_lshlrev_b32 v16, 3, v1
        v_cmp_le_u32 vcc, 112, v0
        v_mov_b32 v17, {(F-112)*4}
        s_mul_i32 s46, s41, 448
        v_cndmask_b32 v17, 0, v17, vcc
        v_lshl_add_u32 v17, v0, 2, v17
        """)
        for j in range(16): k(f"buffer_load_dwordx2 {ar(144+2*j,2)}, v16, s[52:55], s{45 if j < 8 else 47} offen offset:{512*(j%8)}{SC}")
        for j in range(8):
            k(f"buffer_load_dword a{176+j}, v17, s[56:59], s46 offen{SC}\ns_add_u32 s46, s46, {2*F*4}")
    c.pre = pre; c.pre0 = lambda k: None
    gemm_main(k, c, boundary)
    A = lambda j, i: c.vacc + 4 * (j * c.MT + i)
    k("v_accvgpr_read_b32 v5, a176")
    for j in range(1, 8): k(f"v_accvgpr_read_b32 v6, a{176+j}\nv_add_f32 v5, v5, v6")
    k(f"v_lshlrev_b32 v6, 2, v0\nv_add_u32 v6, {XL}, v6\nds_write_b32 v6, v5")
    k("v_accvgpr_read_b32 v18, a144\nv_accvgpr_read_b32 v19, a145")
    for j in range(1, 16): k(f"v_accvgpr_read_b32 v6, a{144+2*j}\nv_accvgpr_read_b32 v7, a{145+2*j}\nv_add_f32 v18, v18, v6\nv_add_f32 v19, v19, v7")
    k(f"""
    v_mul_f32 v18, 0xba800000, v18
    v_mul_f32 v19, 0x3a800000, v19
    v_fma_f32 v19, -v18, v18, v19
    v_max_f32 v19, 0, v19
    v_add_f32 v19, 0x3727c5ac, v19
    v_sqrt_f32 v19, v19
    v_lshlrev_b32 v5, 2, v3
    v_lshlrev_b32 v30, 4, v2
    v_add_u32 v30, {XL}, v30
    v_and_b32 v29, 31, v1
    v_lshlrev_b32 v29, 4, v29
    v_and_b32 v28, 32, v1
    v_lshl_add_u32 v29, v28, 5, v29
    """)
    for i in range(4):
        k(f"ds_bpermute_b32 v{8+i}, v5, v18 offset:{64*i}\nds_bpermute_b32 v{12+i}, v5, v19 offset:{64*i}")
    k(f"""
    s_lshl_b32 s45, s40, 2
    s_add_u32 s45, s45, s42
    s_mul_i32 s45, s45, {112*4096}
    s_mul_i32 s46, s41, 7
    s_waitcnt lgkmcnt(0)
    s_barrier
    """)
    k("ds_read_b128 v[20:23], v30\nds_read_b128 v[24:27], v30 offset:448")
    for i in range(4): k(f"v_rcp_f32 v{16+i}, v{12+i}")
    k("s_nop 0")
    for i in range(4): k(f"v_mul_f32 v{16+i}, 0xbfb8aa3b, v{16+i}")
    for j in range(7):
        k(f"""
        s_add_u32 s47, s46, {j}
        s_lshr_b32 s48, s47, 1
        s_lshl_b32 s48, s48, 12
        s_and_b32 s47, s47, 1
        s_lshl_b32 s47, s47, 9
        s_add_u32 s48, s48, s47
        s_add_u32 s48, s48, s45
        s_waitcnt lgkmcnt(0)
        """)
        for i in range(4):
            for h in range(2):
                k(pk("v_pk_fma_f32", A(j,i)+2*h, 20+2*h, 8+i, A(j,i)+2*h, "b"))
                k(pk("v_pk_fma_f32", A(j+7,i)+2*h, 24+2*h, 8+i, A(j+7,i)+2*h, "b"))
        if j < 6: k(f"ds_read_b128 v[20:23], v30 offset:{64*(j+1)}\nds_read_b128 v[24:27], v30 offset:{448+64*(j+1)}")
        for i in range(4):
            for h in range(2): k(pk("v_pk_mul_f32", A(j,i)+2*h, A(j,i)+2*h, 16+i, None, "b"))
        for i in range(4):
            for r in range(4): k(f"v_exp_f32 v{A(j,i)+r}, v{A(j,i)+r}")
        for i in range(4):
            for h in range(2): k(pk("v_pk_fma_f32", A(j,i)+2*h, A(j,i)+2*h, 12+i, 12+i, "bc"))
        for i in range(4):
            for r in range(4): k(f"v_rcp_f32 v{A(j,i)+r}, v{A(j,i)+r}")
        for i in range(4):
            for h in range(2): k(pk("v_pk_mul_f32", A(j,i)+2*h, A(j,i)+2*h, A(j+7,i)+2*h))
        for ip in range(2):
            a, b = A(j, 2 * ip), A(j, 2 * ip + 1)
            k(f"v_cvt_pk_bf16_f32 v{a}, v{a}, v{a+1}\nv_cvt_pk_bf16_f32 v{a+1}, v{a+2}, v{a+3}")
            k(f"v_cvt_pk_bf16_f32 v{a+2}, v{b}, v{b+1}\nv_cvt_pk_bf16_f32 v{a+3}, v{b+2}, v{b+3}")
        for ip in range(2):
            a = A(j, 2 * ip)
            if ip == 1: k("s_nop 0")
            k(f"v_permlane32_swap_b32 v{a}, v{a+2}\nv_permlane32_swap_b32 v{a+1}, v{a+3}")
            k(f"buffer_store_dwordx4 {vr(a,4)}, v29, s[12:15], s48 offen offset:{ip*2048}{SC}")
```

```python
import sys
from common import *
from gemm import gen_k1, gen_k35, gen_k4
from k2 import gen_k2
NAME = "sequential_preLN__softmax_full_mha__glu_gated_glu__prompt_kernel"
out = sys.argv[1] if len(sys.argv) > 1 else "sequential_preLN__softmax_full_mha__glu_gated_glu__prompt.s"
fb = len(sys.argv) > 2 and sys.argv[2] == "fb"
k = K(NAME, 256, 256, 163840, vgpr=256, agpr=236 if PROF else 200, sgpr=102)
nlab = [0]
def poll(k, srd, mask, target):
    nlab[0] += 1; L = k.lab(f"poll{nlab[0]}")
    k(f"""
    s_mov_b64 exec, {mask}
    s_mov_b32 s45, 0x20000
    {L}:
    buffer_load_dword v31, v30, s[{srd}:{srd+3}], 0 offen sc1
    s_sub_u32 s45, s45, 1
    s_cbranch_scc1 {L}x
    s_waitcnt vmcnt(0)
    v_cmp_gt_u32 vcc, {target}, v31
    s_and_b64 vcc, vcc, exec
    s_cbranch_scc1 {L}
    {L}x:
    s_mov_b64 exec, -1
    """)
def make_boundary(sig, wait, target, mask=1, first=False, st=None):
    k(sig)
    def boundary(nyoung, idle):
        nlab[0] += 1; L = k.lab(f"b{nlab[0]}")
        k(f"s_waitcnt vmcnt({nyoung})\ns_barrier\ns_cmp_lg_u32 s42, 0\ns_cbranch_scc1 {L}a")
        if first:
            k(f"v_readfirstlane_b32 s45, v15\nv_mov_b32 v30, 0\ns_cmp_eq_u32 s45, 1\ns_cbranch_scc1 {L}c"); poll(k, 88, 1, 1); k(f"{L}c:")
        k(f"""
        s_lshl_b32 s92, s92, 8
        v_mov_b32 v30, s92
        v_mov_b32 v31, 1
        s_mov_b64 exec, 1
        buffer_atomic_add v31, v30, s[84:87], 0 offen sc1
        s_mov_b64 exec, -1
        {L}a:
        """)
        if st is not None: k.stamp(st)
        idle()
        k(f"s_cmp_lg_u32 s42, 0\ns_cbranch_scc1 {L}b")
        k(wait); poll(k, 84, mask, target)
        k(f"{L}b:\ns_barrier")
    return boundary

k(f"""
s_cmp_ge_u32 s2, 256
s_cbranch_scc1 {k.lab('end')}
s_load_dwordx16 s[64:79], s[0:1], 0
s_load_dwordx4 s[80:83], s[0:1], 64
""")
if P('CODEPF', 1):
    k(f"""
    s_getpc_b64 s[4:5]
    {k.lab('pc')}:
    s_and_b32 s5, s5, 0xffff
    s_mov_b32 s6, {k.lab('end')} - {k.lab('pc')}
    s_mov_b32 s7, 0x20000
    s_lshr_b32 s16, s2, 3
    s_and_b32 s16, s16, 15
    s_lshl_b32 s16, s16, 12
    v_lshlrev_b32 v7, 4, v0
    buffer_load_dwordx4 a[96:99], v7, s[4:7], s16 offen
    """)
k(f"""
v_and_b32 v1, 63, v0
v_lshrrev_b32 v2, 6, v0
s_and_b32 s38, s2, 7
v_readfirstlane_b32 s42, v2
s_lshr_b32 s39, s2, 3
""")
k.stamp(0)
gen_k1(k, poll)
gen_k2(k, make_boundary("s_add_u32 s92, s41, 16", "s_lshr_b32 s45, s40, 1\ns_add_u32 s45, s45, 16\ns_lshl_b32 s45, s45, 8\nv_mov_b32 v30, s45", 16, st=12), fb)
gen_k35(k, make_boundary("s_add_u32 s92, s41, 32", "s_lshr_b32 s45, s40, 2\ns_add_u32 s45, s45, 32\ns_lshl_b32 s45, s45, 8\nv_mov_b32 v30, s45", 32, st=13), 3)
gen_k4(k, make_boundary("s_lshr_b32 s92, s40, 2\ns_add_u32 s92, s92, 40",
       "s_add_u32 s45, s40, 40\nv_add_u32 v30, 32, v1\nv_mov_b32 v31, s45\nv_cmp_eq_u32 vcc, 8, v1\ns_nop 1\nv_cndmask_b32 v30, v30, v31, vcc\nv_lshlrev_b32 v30, 8, v30", 32, mask=0x1ff, st=14))
gen_k35(k, make_boundary("s_add_u32 s92, s40, 48", "s_lshr_b32 s45, s40, 2\ns_add_u32 s45, s45, 48\ns_lshl_b32 s45, s45, 8\nv_mov_b32 v30, s45", 32, st=15), 5, poll)
if PROF:
    k("s_waitcnt vmcnt(0)"); k.stamp(16)
    k.stamp_end(17)
k.label("end")
write_file(out, [k])
```

```python
from common import *
BIAS = 4096
ST = P('ST', '')

class G:
    pass

def gemm_main(k, c, boundary):
    KGS = c.BK // 32; KG = c.K // 32
    PH = KGS // c.SUB
    NS, LA = c.NS, c.LA
    nst = c.K // c.BK
    assert nst % NS == 0 and (NS * PH) % 2 == 0 and LA <= NS
    nA = (c.TM // 64) * KGS
    Wreg = nA * 4096
    L = nA + c.LW
    fr = ar if c.frag_agpr else vr
    acc = (lambda j, i: ar(4 * (j * c.MT + i), 4)) if c.acc_agpr else (lambda j, i: vr(c.vacc + 4 * (j * c.MT + i), 4))
    XF = lambda st, kk, i: c.vfx + ((st * c.SUB + kk) * c.MT + i) * 4
    WF = lambda st, kk, j: c.vfw + ((st * c.SUB + kk) * c.NT + j) * 4
    nWr = 2 if c.wmode == "cb" else 1
    vAd, vWd = 4, 8
    spb = 65536 // c.slot
    nB = (NS + spb - 1) // spb
    araw = getattr(c, 'araw', False)
    splitk = getattr(c, 'splitk', False)
    nAr = 2 if araw else 1
    vAr = lambda sl: c.vrd + (sl // spb) * (nAr + nWr)
    vWr = lambda sl: vAr(sl) + nAr
    so = lambda sl: (sl % spb) * c.slot
    lg = lambda x: x.bit_length() - 1
    k(f"""
    v_lshrrev_b32 v2, 4, v1
    v_and_b32 v3, 15, v1
    s_and_b32 s40, s38, {c.xm-1}
    s_lshl_b32 s40, s40, {lg(c.tm)}
    s_and_b32 s45, s39, {c.tm-1}
    s_add_u32 s40, s40, s45
    s_lshr_b32 s41, s38, {lg(c.xm)}
    s_lshl_b32 s41, s41, {lg(32//c.tm)}
    s_lshr_b32 s45, s39, {lg(c.tm)}
    s_add_u32 s41, s41, s45
    s_lshr_b32 s43, s42, {lg(c.WN)}
    s_and_b32 s44, s42, {c.WN-1}
    v_lshlrev_b32 v{vAd}, 4, v1
    """)
    if c.name in ('p3', 'p5') and P('MAP', 1):
        k("s_and_b32 s40, s38, 2\ns_lshl_b32 s40, s40, 2\ns_and_b32 s45, s39, 7\ns_add_u32 s40, s40, s45\ns_lshl_b32 s40, s40, 1\ns_and_b32 s45, s38, 1\ns_add_u32 s40, s40, s45")
    wpm = 4 // (c.TM // 64)
    if araw:
        k(f"""
        s_lshl_b32 s45, s40, 7
        s_lshl_b32 s46, s42, 5
        s_add_u32 s45, s45, s46
        s_lshl_b32 s16, s45, 11
        s_lshl_b32 s18, s42, 12
        v_lshrrev_b32 v20, 3, v1
        v_lshrrev_b32 v21, 4, v1
        v_and_b32 v22, 7, v1
        v_xor_b32 v21, v21, v22
        v_lshlrev_b32 v20, 11, v20
        v_lshl_add_u32 v14, v21, 4, v20
        v_add_u32 v14, s16, v14
        s_add_u32 s21, s40, s41
        s_and_b32 s94, s21, {15 - P('ROT', 12)}
        s_and_b32 s21, s21, {P('ROT', 12)}
        s_lshl_b32 s16, s21, 7
        v_xor_b32 v15, 64, v14
        v_add_u32 v15, {16384-1024}, v15
        v_add_u32 v16, {2*(16384-1024)}, v14
        v_add_u32 v17, {2*(16384-1024)}, v15
        v_lshrrev_b32 v20, 1, v3
        v_xor_b32 v20, v20, v2
        v_lshlrev_b32 v20, 4, v20
        v_lshl_add_u32 v20, v3, 7, v20
        s_lshl_b32 s45, s43, 13
        v_add_u32 v{vAr(0)}, s45, v20
        v_xor_b32 v{vAr(0)+1}, 64, v{vAr(0)}
        """)
    elif splitk:
        k(f"""
        s_lshr_b32 s45, s42, 1
        s_xor_b32 s45, s45, s40
        s_lshl_b32 s45, s45, 1
        s_and_b32 s21, s40, 1
        s_add_u32 s45, s45, s21
        s_mul_i32 s31, s45, {KG*4096}
        s_and_b32 s46, s42, 1
        s_lshl_b32 s16, s46, 12
        s_lshl_b32 s18, s42, 12
        s_lshl_b32 s45, s43, 11
        v_add_u32 v{vAr(0)}, s45, v{vAd}
        s_mul_i32 s21, s21, {c.K*c.wstride}
        """)
    else:
        k(f"""
        s_lshr_b32 s45, s42, {lg(wpm)}
        s_lshl_b32 s46, s40, {lg(c.TM//64)}
        s_add_u32 s45, s45, s46
        s_mul_i32 s31, s45, {KG*4096}
        s_and_b32 s46, s42, {wpm-1}
        s_mul_i32 s16, s46, {nA*1024}
        s_mul_i32 s18, s42, {nA*1024}
        """)
        if c.TM == 64: wpart = f"s_lshl_b32 s45, s43, {10 + lg(c.MT)}"
        else: wpart = f"s_lshl_b32 s45, s43, {12 + lg(KGS)}"
        k(f"{wpart}\nv_add_u32 v{vAr(0)}, s45, v{vAd}")
    if c.wmode == "cb":
        RGW = c.BK // 32
        k(f"""
        v_lshrrev_b32 v20, 3, v1
        v_and_b32 v21, 7, v1
        v_and_b32 v22, {2 if c.kperm == 2 else 6}, v20
        v_xor_b32 v21, v21, v22
        v_lshlrev_b32 v21, 4, v21
        v_mul_u32_u24 v20, {c.wstride}, v20
        v_add_u32 v20, v20, v21
        """)
        k(f"""
        s_mul_i32 s17, s42, {RGW*8*c.wstride}
        s_mul_i32 s45, s41, {c.colstep}
        s_add_u32 s17, s17, s45
        s_mul_i32 s19, s42, {c.LW*1024}
        s_add_u32 s19, s19, {Wreg}
        """)
        if araw: k(f"v_add_u32 v20, s17, v20\ns_mul_i32 s17, s21, {c.BK*c.wstride}")
        for i in range(c.LW):
            rg, cb = divmod(i, c.NCB)
            if c.kperm == 2 and rg == 1 and cb == 0: k("v_xor_b32 v20, 64, v20")
            k(f"v_add_u32 v{vWd+i}, {BIAS + rg*8*c.wstride + cb*c.cbstride - (i%4)*1024}, v20")
        rdsetup = f"""
        v_lshrrev_b32 v20, 2, v1
        v_and_b32 v20, 7, v20
        v_lshrrev_b32 v21, 1, v20
        s_lshl_b32 s45, s44, 1
        v_xor_b32 v21, s45, v21
        v_lshlrev_b32 v21, 5, v21
        v_lshlrev_b32 v20, 7, v20
        v_lshrrev_b32 v22, 5, v1
        v_mul_u32_u24 v22, {c.NCB*1024*(2 if c.kperm else 1)}, v22
        v_add_u32 v20, v20, v22
        v_and_b32 v22, 3, v1
        v_lshl_add_u32 v20, v22, 3, v20
        v_add_u32 v20, {Wreg}, v20
        v_add_u32 v{vWr(0)}, v20, v21
        v_xor_b32 v21, 32, v21
        v_add_u32 v{vWr(0)+1}, v20, v21
        """
        if c.kperm == 2:
            rdsetup = f"""
            v_lshrrev_b32 v20, 2, v1
            v_and_b32 v22, 3, v20
            v_lshrrev_b32 v21, 1, v20
            v_and_b32 v21, 3, v21
            s_lshl_b32 s45, s44, 1
            v_xor_b32 v21, s45, v21
            v_lshlrev_b32 v21, 5, v21
            v_lshlrev_b32 v20, 7, v22
            v_mul_u32_u24 v22, {c.NCB*1024}, v2
            v_add_u32 v20, v20, v22
            v_and_b32 v22, 3, v1
            v_lshl_add_u32 v20, v22, 3, v20
            v_add_u32 v20, {Wreg}, v20
            v_add_u32 v{vWr(0)}, v20, v21
            v_xor_b32 v21, 32, v21
            v_add_u32 v{vWr(0)+1}, v20, v21
            """
        def wread(sl, st, kk_s, kk, j, half):
            cb, uu = divmod(j, 2)
            if c.kperm == 2: return f"ds_read_b64_tr_b16 {fr(WF(st,kk,j)+2*half,2)}, v{vWr(sl)+uu} offset:{so(sl)+(4*kk_s*c.NCB+cb)*1024+half*512}"
            return f"ds_read_b64_tr_b16 {fr(WF(st,kk,j)+2*half,2)}, v{vWr(sl)+uu} offset:{so(sl)+((4*kk_s+(1 if c.kperm else 2)*half)*c.NCB+cb)*1024}"
    else:
        k(f"""
        s_and_b32 s45, s42, 1
        s_mul_i32 s45, s45, 192
        v_add_u32 v20, s45, v1
        s_mov_b32 s46, 0x12492493
        """)
        for i in range(4):
            k(f"""
            v_add_u32 v21, {64*i}, v20
            v_mul_hi_u32 v22, v21, s46
            v_mul_u32_u24 v23, 14, v22
            v_sub_u32 v21, v21, v23
            v_mul_u32_u24 v22, {c.wstride}, v22
            v_lshl_add_u32 v22, v21, 4, v22
            v_add_u32 v{vWd+i}, {BIAS - i*1024}, v22
            """)
        k(f"""
        s_mul_i32 s17, s41, 224
        s_lshr_b32 s46, s42, 1
        s_mul_i32 s46, s46, 7168
        s_lshl_b32 s45, s45, 4
        s_add_u32 s19, s45, s46
        s_add_u32 s19, s19, {Wreg}
        """)
        rdsetup = f"""
        v_lshrrev_b32 v20, 2, v1
        v_mul_u32_u24 v20, 224, v20
        v_and_b32 v21, 3, v1
        v_lshl_add_u32 v20, v21, 3, v20
        v_add_u32 v{vWr(0)}, {Wreg}, v20
        """
        def wread(sl, st, kk_s, kk, j, half):
            return f"ds_read_b64_tr_b16 {fr(WF(st,kk,j)+2*half,2)}, v{vWr(sl)} offset:{so(sl) + half*16*224 + (j%7)*32 + (j//7)*7168}"
    def xread(sl, st, kk_s, kk, i):
        if araw: return f"ds_read_b128 {fr(XF(st,kk,i),4)}, v{vAr(sl)+kk_s} offset:{so(sl)+i*2048}"
        if splitk: return f"ds_read_b128 {fr(XF(st,kk,i),4)}, v{vAr(sl)} offset:{so(sl)+(i>>1)*8192+kk_s*4096+(i&1)*1024}"
        return f"ds_read_b128 {fr(XF(st,kk,i),4)}, v{vAr(sl)} offset:{so(sl)+(kk_s*4+i)*1024}"
    def reads(sl, st, ph):
        out = []
        for kk in range(c.SUB):
            kk_s = ph * c.SUB + kk
            out += [xread(sl, st, kk_s, kk, i) for i in range(c.MT)]
            for j in range(c.NT): out += [wread(sl, st, kk_s, kk, j, 0), wread(sl, st, kk_s, kk, j, 1)]
        return out
    def dmaA(sl):
        if araw:
            return [f"s_add_u32 m0, s18, {sl*c.slot}", f"s_add_u32 s16, s16, 128\ns_and_b32 s16, s16, 2047"] + \
                   [f"buffer_load_dwordx4 v{14+i}, s[4:7], s16 offen offset:{i*1024} lds" for i in range(4)]
        return [f"s_add_u32 m0, s18, {sl*c.slot}", f"s_add_u32 s16, s16, {KGS*4096}"] + \
               [f"buffer_load_dwordx4 v{vAd}, s[4:7], s16 offen offset:{i*1024}{SC} lds" for i in range(nA)]
    def dmaW(sl):
        o = []
        for i in range(c.LW):
            if i % 4 == 0:
                o += [f"s_add_u32 m0, s19, {sl*c.slot + i*1024}", "s_nop 0" if i else f"s_add_u32 s17, s17, {c.BK*c.wstride}"]
                if araw and i == 0: o += [f"s_cmp_eq_u32 s17, {c.K*c.wstride}\ns_cselect_b32 s17, 0, s17"]
            o += [f"buffer_load_dwordx4 v{vWd+i}, s[8:11], s17 offen offset:{(i%4)*1024} lds"]
        return o
    def dma(sl): return dmaA(sl) + dmaW(sl)
    k(f"s_sub_u32 s17, s17, {c.BK*c.wstride}\ns_sub_u32 s16, s16, {128 if araw else KGS*4096}")
    c.srds(k)
    if splitk: k("s_add_u32 s17, s17, s21\ns_add_u32 s10, s10, s21")
    if not araw: k(f"s_add_u32 s4, s4, s31\ns_addc_u32 s5, s5, 0\ns_mov_b32 s6, {KG*4096}")
    def split(sl):
        return (dmaA(sl), dmaW(sl)) if PH == 2 else (dma(sl), [])
    nWpre = LA - 1 if PH == 2 else LA
    def idle():
        for s in range(nWpre): k.ext(dmaW(s))
        k(rdsetup)
        for b in range(1, nB):
            for r in range(nAr + nWr): k(f"v_add_u32 v{c.vrd+b*(nAr+nWr)+r}, {b*spb*c.slot}, v{c.vrd+r}")
        for j in range(c.NT):
            for i in range(c.MT):
                for r in range(4):
                    k(f"v_accvgpr_write_b32 a{4*(j*c.MT+i)+r}, 0" if c.acc_agpr else f"v_mov_b32 v{c.vacc+4*(j*c.MT+i)+r}, 0")
        c.pre0(k)
    if araw:
        nWpre = 0
        for s in range(LA):
            k.ext(dma(s) if s < LA - 1 else dmaA(s))
            if s == P('IDL', 0): idle()
            if s == P('WRM', 0) and P('PAD', 12) < 999:
                k("s_mov_b64 exec, 0")
                for w in range(3): k(f"s_cmp_eq_u32 s42, {w}\ns_cbranch_scc1 {k.lab(f'pad{w}_0')}")
                k(f"s_branch {k.lab('pad3_0')}\n{k.lab('padret')}:\ns_mov_b64 exec, -1")
        if not P('ITS', 0): k.stamp(1)
        k(f"s_waitcnt vmcnt({(LA-2)*L + nA})")
        c.pre(k)
        k("s_barrier")
    else:
        boundary(0, idle)
        for s in range(LA):
            if s == LA - 1: c.pre(k)
            k.ext(dmaA(s))
        k(f"s_waitcnt vmcnt({nA + c.pre_vm})\ns_barrier")
    k.stamp(c.st)
    k.ext(reads(0, 0, 0))
    k(f"s_mov_b32 s20, {nst // NS}\ns_waitcnt lgkmcnt(0)")
    nloop = len(k.L); ctx = {}
    k.label(c.name + "loop")
    if P('ITS', 0) and c.name == P('ITP', 'p1'):
        k(f"s_cmp_eq_u32 s20, {P('ITS', 0)}\ns_cbranch_scc0 {k.lab('its')}"); k.stamp(1); k.label("its")
    for p in range(NS * PH):
        sl, ph = divmod(p, PH)
        st = p % 2
        lastph = ph == PH - 1
        mf = []
        for kk in range(c.SUB):
            for j in range(c.NT):
                for i in range(c.MT):
                    a, b = fr(WF(st, kk, j), 4), fr(XF(st, kk, i), 4)
                    if c.swap(j): a, b = b, a
                    mf.append(f"v_mfma_f32_16x16x32_bf16 {acc(j,i)}, {a}, {b}, {acc(j,i)}")
        if lastph:
            rd = reads((sl + 1) % NS, 1 - st, 0)
            k(mf[0]); mf = mf[1:]
            if araw:
                alts = c.alt.get(sl, [])
                for cond, ex in alts: k(f"{cond}\ns_cbranch_scc1 {k.lab(f'alt{sl}{ex}')}")
                k(f"s_waitcnt vmcnt({(LA-2)*L})")
                for cond, ex in alts: k(f"{k.lab(f'alt{sl}{ex}')}:\ns_waitcnt vmcnt({(LA-2)*L + ex})")
                k("s_barrier")
                for cond, nm in c.hooks[sl]:
                    k(mf[0]); mf = mf[1:]
                    if nm in c.merged: ctx[nm] = (sl, mf, rd, split((sl + LA) % NS)[0])
                    k(f"{cond}\ns_cbranch_scc1 {k.lab(nm)}\n{k.lab(f'{nm}r{sl}')}:")
                if sl == 1: k(mf[0]); mf = mf[1:]
                if sl == 1: k("s_cmp_eq_u32 s20, 1\ns_cselect_b32 s6, 0, s6\ns_cselect_b32 s10, 0, s10")
            else: k(f"s_waitcnt vmcnt({(LA-2)*L})\ns_barrier")
            fill = merge(rd, split((sl + LA) % NS)[0])
        else:
            rd = reads(sl, 1 - st, ph + 1)
            p2 = split((sl + LA - 1) % NS)[1]
            fill = merge(rd, p2) if p2 else rd
        if p in getattr(c, 'extra', {}): fill = merge(fill, c.extra[p])
        body = interleave(mf, fill, span=c.span)
        if p == NS * PH - 1:
            body.insert(len(body) - 2, "s_sub_u32 s20, s20, 1"); body.insert(len(body) - 1, "s_cmp_lg_u32 s20, 0")
        k.ext(body)
        if araw and lastph: k.label(f"phend{sl}")
        k("s_waitcnt lgkmcnt(0)")
    if araw:
        looptxt = k.L[nloop:]; del k.L[nloop:]
        k(f"s_branch {k.lab(c.name + 'loop')}")
        for w, chain in enumerate(c.chains):
            n0 = len(k.L)
            for nm, body, ret in chain:
                k.label(nm)
                if nm in ctx:
                    sl, mfr, rd, dm = ctx[nm]
                    ex = body(k, XF, WF)
                    if nm == 'red2': rd = []
                    if nm in ('red1', 'red2'): dm = []
                    k.ext(interleave(mfr, merge(*[x for x in (rd, dm, ex) if x]), span=0.95))
                    if sl == NS - 1: k("s_sub_u32 s20, s20, 1\ns_cmp_lg_u32 s20, 0")
                    k(f"s_branch {k.lab(f'phend{sl}')}")
                else:
                    body(k, XF, WF); k(ret)
            txt = k.L[n0:]; del k.L[n0:]
            step = P('PAD', 12); np_ = (len(txt) + step - 1) // step
            for q in range(np_):
                if step < 999: k(f"{k.lab(f'pad{w}_{q}')}:\ns_cbranch_execz {k.lab(f'pad{w}_{q+1}' if q + 1 < np_ else 'padret')}")
                k.L += txt[q*step:(q+1)*step]
        k.L += looptxt
    k(f"s_cbranch_scc1 {k.lab(c.name + 'loop')}")
    k("s_waitcnt vmcnt(0)\ns_barrier\ns_nop 5")
    k.stamp(c.st + 1)

def cvt_pair(k, dst, a, b):
    k(f"v_cvt_pk_bf16_f32 v{dst}, v{a}, v{a+1}\nv_cvt_pk_bf16_f32 v{dst+1}, v{a+2}, v{a+3}")
    k(f"v_cvt_pk_bf16_f32 v{dst+2}, v{b}, v{b+1}\nv_cvt_pk_bf16_f32 v{dst+3}, v{b+2}, v{b+3}")

def head(k, n):
    k(f"s_cmp_ge_u32 s2, {n}\ns_cbranch_scc1 {k.lab('end')}")

def pk(op, d, a, b, cc=None, bc=""):
    ops = [("a", a), ("b", b)] + ([("c", cc)] if cc is not None else [])
    txt, sel, selh = [], [], []
    for nm, r in ops:
        if nm in bc:
            txt.append(vr(r & ~1, 2)); sel.append(r & 1); selh.append(r & 1)
        else:
            txt.append(vr(r, 2)); sel.append(0); selh.append(1)
    return f"{op} {vr(d,2)}, {', '.join(txt)} op_sel:[{','.join(map(str,sel))}] op_sel_hi:[{','.join(map(str,selh))}]"

def gen_k1(k, poll):
    c = G(); c.name, c.st, c.kperm, c.araw = 'p1', 2, 2, True
    c.K, c.TM, c.BK, c.NS, c.SUB, c.MT, c.NT, c.WN = 1024, 128, 64, 4, 1, 4, 6, 2
    c.LA, c.vrd, c.frag_agpr = 3, 208, False
    c.wmode, c.NCB, c.LW, c.wstride, c.cbstride, c.colstep = "cb", 3, 6, 6144, 2048, 128
    c.slot, c.xm, c.tm = 40960, 2, 8
    c.acc_agpr, c.vacc, c.vfx, c.vfw = False, 32, 128, 160
    c.swap = lambda j: j >= 4
    c.span, c.cutg = P('SP1', 0.85), 0
    def srds(k):
        k("s_waitcnt lgkmcnt(0)")
        k.srd(4, PX, 0, S * D * 2)
        k.srd(8, PWQKV, -BIAS, D * 3 * D * 2 + BIAS)
        k.srd(84, PWS, WS_CNT, 128 * 256 + 1024 * 64)
        k(f"""
        s_lshl_b32 s47, s2, 2
        s_add_u32 s47, s47, s42
        s_cmp_lg_u32 s47, 3
        s_cbranch_scc1 {k.lab('noinit')}
        v_lshlrev_b32 v20, 8, v1
        v_mov_b32 v21, 0
        s_mov_b32 s45, 16384
        buffer_store_dword v21, v20, s[84:87], 0 offen sc1
        buffer_store_dword v21, v20, s[84:87], s45 offen sc1
        {k.lab('noinit')}:
        """)
    c.srds = srds
    def pre0(k):
        k.srd(12, PWS, WS_Q, 12 * MB)
        k.srd(88, PDBG, 0, 256)
        k.srd(52, PWS, WS_XN, 16 * 16384)
        k.srd(56, PWS, WS_XN + MB, 16 * 16384)
        k.srd(60, PWO, 0, D * D * 2)
        for r in range(4): k(f"v_mov_b32 v{20+r}, 0x3f803f80")
        k("v_and_b32 v24, 3, v1")
        for q in range(3): k(f"v_cmp_eq_u32 {sr(22+2*q,2)}, {q+1}, v2\nv_cmp_eq_u32 {sr(28+2*q,2)}, {q+1}, v24")
        k(f"""
        v_and_b32 v24, 31, v1
        v_lshrrev_b32 v25, 5, v1
        v_lshlrev_b32 v24, 2, v24
        v_lshl_add_u32 v24, v25, 12, v24
        v_lshlrev_b32 v25, 4, v3
        s_lshl_b32 s48, s40, 14
        s_lshl_b32 s45, s43, 13
        s_lshl_b32 s50, s41, 8
        s_lshl_b32 s46, s44, 7
        s_add_u32 s48, s48, s45
        s_add_u32 s46, s46, s50
        s_add_u32 s48, s48, s46
        s_lshl_b32 s49, s41, 14
        s_lshl_b32 s51, s40, 10
        s_lshl_b32 s45, s42, 8
        s_add_u32 s49, s49, s51
        s_add_u32 s49, s49, s45
        v_lshl_add_u32 v28, v2, 12, v25
        s_lshl_b32 s45, s42, 16
        s_add_u32 s50, s50, s45
        s_add_u32 s51, s51, s45
        v_bfe_u32 v26, v0, 5, 2
        v_lshl_add_u32 v27, v26, 8, v25
        v_and_b32 v26, 1, v2
        v_lshl_add_u32 v27, v26, 3, v27
        v_add_u32 v27, {2 * c.slot + 16384}, v27
        v_mov_b32 v30, 0
        v_mov_b32 v31, 1
        s_sub_u32 s45, s41, s40
        s_add_u32 s45, s45, 64
        v_and_b32 v19, 1, v1
        v_mul_u32_u24 v19, s45, v19
        v_add_lshl_u32 v19, v19, s40, 8
        v_and_b32 v18, 0xc0, v0
        v_lshlrev_b32 v18, 2, v18
        s_cmp_eq_u32 s42, 0
        s_cselect_b32 s93, 3, 2
        s_mov_b32 s34, 0x00f0000f
        s_mov_b32 s35, 0xf0000f00
        """)
    c.pre0 = pre0
    c.pre = lambda k: k(f"""
        s_cmp_lg_u32 s47, 3
        s_cbranch_scc1 {k.lab('noinit2')}
        s_mov_b64 exec, 1
        buffer_store_dword v31, v30, s[88:91], 0 offen sc1
        s_mov_b64 exec, -1
        {k.lab('noinit2')}:
        """)
    EX = 2 * c.slot + 16384
    def sums(k, XF, WF):
        for st in range(2):
            cc = lambda a: ar(a, 4) if st else "0"
            for j in range(6): k(f"v_mfma_f32_16x16x32_bf16 {ar(4*j,4)}, v[20:23], {vr(WF(st,0,j),4)}, {cc(4*j)}")
            for i in range(4):
                x = vr(XF(st, 0, i), 4)
                k(f"v_mfma_f32_16x16x32_bf16 {ar(24+4*i,4)}, v[20:23], {x}, {cc(24+4*i)}")
                k(f"v_mfma_f32_16x16x32_bf16 {ar(40+4*i,4)}, {x}, {x}, {cc(40+4*i)}")
        k("s_mov_b32 s45, s94\ns_mov_b32 s94, 7")
        for sl in range(3): k(f"s_cmp_eq_u32 s45, {sl}\ns_cbranch_scc1 {k.lab(f'sumsr{sl}')}")
    def publish(k, XF, WF):
        e = k.lab('pub')
        o = [f"v_accvgpr_read_b32 v{224+j}, a{4*j}" for j in range(6)]
        t = f"s_cmp_eq_u32 s44, 0\ns_cbranch_scc1 {e}a\n"
        for wn in (1, 0):
            for q in range(2):
                t += f"v_accvgpr_read_b32 v{232+2*q}, a{24+4*(2*wn+q)}\nv_accvgpr_read_b32 v{233+2*q}, a{40+4*(2*wn+q)}\n"
                for r in range(1, 4): t += f"v_accvgpr_read_b32 v{236+4*q+r}, a{40+4*(2*wn+q)+r}\n"
            t += f"s_branch {e}b\n{e}a:\n" if wn else f"{e}b:"
        o += [t, "s_cmp_eq_u32 s43, 0\ns_cselect_b64 vcc, 0, -1", "v_cndmask_b32 v228, v228, v229, s[22:23]"]
        for q in range(3):
            o += [f"v_cndmask_b32 v224, v224, v{225+q}, {sr(22+2*q,2)}", f"v_cndmask_b32 v233, v233, v{237+q}, {sr(28+2*q,2)}",
                  f"v_cndmask_b32 v235, v235, v{241+q}, {sr(28+2*q,2)}"]
        return o + ["v_cndmask_b32 v224, v224, v228, vcc", "s_lshl_b32 s45, s2, 13", "v_lshlrev_b32 v26, 4, v0",
            "buffer_store_dword v224, v24, s[56:59], s48 offen sc1",
            "s_mov_b64 exec, s[34:35]\nbuffer_store_dwordx4 v[232:235], v25, s[52:55], s49 offen sc1\ns_mov_b64 exec, -1\ns_nop 1",
            "s_lshl_b32 s46, s47, 6", "s_add_u32 s46, s46, 32768",
            "s_mov_b64 exec, 1\nbuffer_store_dword v30, v30, s[84:87], s46 offen sc1\ns_mov_b64 exec, -1\ns_nop 1",
            "buffer_load_dword v29, v18, s[88:91], 0 offen sc1", "buffer_load_dwordx4 a[100:103], v26, s[60:63], s45 offen",
            "s_add_u32 s45, s45, 4096", "buffer_load_dwordx4 a[104:107], v26, s[60:63], s45 offen"]
    def signal(k, XF, WF):
        k(f"s_cmp_eq_u32 s20, 2\ns_cbranch_scc1 {k.lab('look')}")
        k(f"v_readfirstlane_b32 s45, v29\ns_cmp_eq_u32 s45, 1\ns_cbranch_scc1 {k.lab('sigi')}")
        poll(k, 88, 1, 1)
        k(f"""
        {k.lab('sigi')}:
        v_mov_b32 v31, 1
        s_mov_b64 exec, 3
        buffer_atomic_add v31, v19, s[84:87], 0 offen sc1
        s_mov_b64 exec, -1
        """)
    def look(k, XF, WF): k("v_mov_b32 v30, v19\nbuffer_load_dword v18, v19, s[84:87], 0 offen sc1")
    def fetch(k, XF, WF):
        k(f"v_cmp_gt_u32 vcc, 16, v18\ns_and_b64 vcc, vcc, exec\ns_cbranch_scc0 {k.lab('feg')}")
        poll(k, 84, 3, 16)
        k(f"{k.lab('feg')}:")
        o = []
        for j in range(4):
            o += [f"buffer_load_dwordx4 {vr(224+4*j,4)}, v4, s[52:55], s51 offen sc1", "s_add_u32 s51, s51, 16384",
                  f"buffer_load_dwordx4 {vr(240+4*j,4)}, v28, s[56:59], s50 offen sc1", "s_add_u32 s50, s50, 16384"]
        return o
    def red1(k, XF, WF):
        o = [pk("v_pk_add_f32", b+j, b+j, b+j+h) for h in (8, 4) for b in (224, 240) for j in range(0, h, 2)]
        return o + ["v_lshlrev_b32 v26, 4, v0", f"v_add_u32 v26, {EX}, v26", "ds_write_b128 v26, v[224:227] offset:2048", "ds_write_b128 v26, v[240:243] offset:6144",
                    "v_lshlrev_b32 v20, 2, v0", "v_and_b32 v21, 0x1fc, v20", f"v_add_u32 v20, {EX}, v20", f"v_add_u32 v21, {EX}, v21"]
    def red2(k, XF, WF):
        k("ds_read2st64_b64 v[224:227], v27 offset0:4 offset1:6\nds_read2st64_b64 v[228:231], v27 offset0:8 offset1:10")
        k("ds_read2st64_b32 v[240:241], v20 offset0:24 offset1:28\nds_read2st64_b32 v[242:243], v20 offset0:32 offset1:36")
        return f"""s_lshl_b32 s45, s44, 7
        s_lshl_b32 s46, s43, 8
        s_add_u32 s45, s45, {EX}
        s_add_u32 s46, s46, {EX}
        v_lshl_add_u32 v22, v2, 4, s45
        v_lshl_add_u32 v23, v3, 2, s45
        v_lshl_add_u32 v24, v3, 2, s46
        v_lshl_add_u32 v25, v2, 4, s46
        s_waitcnt lgkmcnt(0)
        {pk("v_pk_add_f32", 224, 224, 226)}
        {pk("v_pk_add_f32", 228, 228, 230)}
        {pk("v_pk_add_f32", 240, 240, 242)}
        {pk("v_pk_add_f32", 224, 224, 228)}
        v_add_f32 v240, v240, v241
        v_mul_f32 v224, 0xba800000, v224
        v_mul_f32 v225, 0x3a800000, v225
        ds_write_b32 v20, v240
        v_fma_f32 v225, -v224, v224, v225
        v_max_f32 v225, 0, v225
        v_add_f32 v225, 0x3727c5ac, v225
        v_rsq_f32 v225, v225
        s_nop 0
        ds_write2st64_b32 v21, v224, v225 offset0:4 offset1:6""".split("\n")
    c.merged = ("publish", "fetch", "red1", "red2")
    it = lambda n: f"s_cmp_eq_u32 s20, {n}"
    c.hooks = {sl: [(f"s_cmp_eq_u32 s94, {sl}", "sums")] for sl in range(4)}
    c.hooks[0] += [(it(3), "publish"), (it(1), "fetch")]
    c.hooks[2] += [(it('s93'), "signal"), (it(1), "red1")]
    c.hooks[3] += [(it(1), "red2")]
    br = lambda n: f"s_branch {k.lab(n)}"
    c.chains = [[("sums", sums, br("sumsr3")), ("red2", red2, br("red2r3"))], [("publish", publish, br("publishr0"))],
                [("signal", signal, br("signalr2")), ("look", look, br("signalr2")), ("fetch", fetch, br("fetchr0"))],
                [("red1", red1, br("red1r2"))]]
    c.alt = {1: [(it(3), 6), (it(1), 8)], 3: [(it('s93') + "\ns_cselect_b32 s93, 2, s93", 1)]}
    gemm_main(k, c, None)
    A = lambda j, i: c.vacc + 4 * (j * c.MT + i)
    CSQ, TS, CSV, TV = 128, 144, 152, 160
    for j in range(4): k(f"ds_read_b128 {vr(CSQ+4*j,4)}, v22 offset:{(j//2)*256 + (j%2)*64}")
    for i in range(4): k(f"ds_read_b32 v{TS+i}, v24 offset:{1024+64*i}\nds_read_b32 v{TS+4+i}, v24 offset:{1536+64*i}")
    k("s_waitcnt lgkmcnt(0)")
    for jd in range(2): k(f"ds_read_b32 v{CSV+jd}, v23 offset:{512+64*jd}")
    for i in range(4): k(f"ds_read_b128 {vr(TV+8*i,4)}, v25 offset:{1024+64*i}\nds_read_b128 {vr(TV+8*i+4,4)}, v25 offset:{1536+64*i}")
    for i in range(4): k(f"v_mul_f32 v{192+i}, 0x3e8293ee, v{TS+4+i}")
    for j in (2, 3, 0, 1):
        for i in range(4):
            for h in range(2): k(pk("v_pk_fma_f32", A(j,i)+2*h, CSQ+4*j+2*h, TS+i, A(j,i)+2*h, "b"))
        for i in range(4):
            for h in range(2): k(pk("v_pk_mul_f32", A(j,i)+2*h, A(j,i)+2*h, (192 if j < 2 else TS+4)+i, None, "b"))
    k("s_waitcnt lgkmcnt(0)")
    for jd in range(2):
        for i in range(4):
            for h in range(2): k(pk("v_pk_fma_f32", A(4+jd,i)+2*h, TV+8*i+2*h, CSV+jd, A(4+jd,i)+2*h, "b"))
        for i in range(4):
            for h in range(2): k(pk("v_pk_mul_f32", A(4+jd,i)+2*h, A(4+jd,i)+2*h, TV+8*i+4+2*h))
    k(f"""
    s_lshl_b32 s45, s41, 1
    s_add_u32 s45, s45, s44
    s_lshl_b32 s46, s40, 2
    s_lshl_b32 s47, s43, 1
    s_add_u32 s46, s46, s47
    s_lshl_b32 s45, s45, 6
    s_add_u32 s45, s45, s46
    s_lshl_b32 s46, s45, 11
    s_lshl_b32 s47, s45, 12
    s_add_u32 s47, s47, {WS_KV - WS_Q}
    s_mov_b32 s48, 0x3e8293ee
    """)
    k("""
    v_lshlrev_b32 v10, 9, v2
    v_lshl_add_u32 v11, v3, 4, v10
    v_and_b32 v12, 7, v3
    v_lshlrev_b32 v12, 4, v12
    v_and_b32 v13, 8, v3
    v_lshl_add_u32 v12, v13, 5, v12
    v_add_u32 v12, v12, v10
    """)
    for i in range(4):
        cvt_pair(k, 128 + 4 * i, A(0, i), A(1, i))
        k(f"buffer_store_dwordx4 {vr(128+4*i,4)}, v11, s[12:15], s46 offen offset:{(i//2)*2048 + (i%2)*256}{SC}")
    k("s_add_u32 s49, s47, 4096")
    for i in range(4):
        cvt_pair(k, 144 + 4 * i, A(2, i), A(3, i))
        k(f"buffer_store_dwordx4 {vr(144+4*i,4)}, v12, s[12:15], s{47 if i < 2 else 49} offen offset:{(i%2)*128}{SC}")
    for jd in range(2):
        for ii in range(2):
            cvt_pair(k, 160 + 4 * (2 * jd + ii), A(4 + jd, 2 * ii), A(4 + jd, 2 * ii + 1))
            k(f"buffer_store_dwordx4 {vr(160+4*(2*jd+ii),4)}, v11, s[12:15], s{47 if ii == 0 else 49} offen offset:{2048 + jd*256}{SC}")

def gen_k35(k, boundary, which, poll=None):
    c = G(); c.name, c.st, c.kperm = f'p{which}', 6 if which == 3 else 10, which == 5
    c.K = 1024 if which == 3 else F
    c.TM, c.BK, c.NS, c.SUB, c.MT, c.NT, c.WN = 64, 64, 4, 2, 2, 4, 2
    c.LA, c.vrd, c.frag_agpr = P('LA5', 4), 24, False
    c.wmode, c.NCB, c.LW, c.wstride, c.cbstride, c.colstep = "cb", 2, 4, 2048, 128, 256
    c.slot, c.xm, c.tm = 24576, 4, 8
    c.acc_agpr, c.vacc, c.vfx, c.vfw = False, 32, 64, 96
    c.swap = lambda j: False
    c.span, c.cutg = P('SP5', 0.8), 1
    c.pre_vm = 0
    SPL = which == 5 and P('SPLIT', 1)
    if SPL:
        c.splitk, c.K, c.TM, c.MT, c.slot, c.vfx, c.vfw = True, F // 2, 128, 4, 32768, 96, 160
        c.SUB, c.LA, c.span = P('SUB5', 2), P('LA5S', 4), P('SP5S', 0.8)
    def srds(k):
        k.srd(4, PWS, WS_O if which == 3 else WS_ACT, S * c.K * 2)
        k.srd(8, PWO if which == 3 else PWD, -BIAS, c.K * D * 2 + BIAS)
        k.srd(12, PWS, WS_H, S * D * 2)
        k.srd(52, PX if which == 3 else POUT, 0, S * D * 2)
        if which == 3: k.srd(56, PWS, WS_ST, S * 128)
        if SPL: k.srd(56, PWS, WS_KV, 8 * MB)
    c.srds = srds
    R = 224 if SPL else 160
    def pre(k):
        k(f"""
        s_lshl_b32 s45, s40, 6
        s_lshl_b32 s46, s43, 5
        s_add_u32 s45, s45, s46
        v_add_u32 v17, s45, v3
        v_lshlrev_b32 v16, 11, v17
        s_lshl_b32 s45, s41, 8
        s_lshl_b32 s46, s44, 6
        s_add_u32 s45, s45, s46
        v_and_b32 v18, 1, v2
        v_lshl_add_u32 v16, v18, 5, v16
        v_lshrrev_b32 v18, 1, v2
        v_lshl_add_u32 v16, v18, 4, v16
        v_add_u32 v16, s45, v16
        s_lshl_b32 s45, s40, 5
        s_lshl_b32 s46, s41, 2
        s_add_u32 s45, s45, s46
        s_add_u32 s45, s45, s44
        s_lshl_b32 s45, s45, 12
        s_lshl_b32 s46, s43, 11
        s_add_u32 s50, s45, s46
        s_add_u32 s51, s50, 8192
        s_mov_b32 s49, 32768
        """)
        for cb in range(2):
            for i in range(2):
                r = R + 4 * (cb * 2 + i)
                if which == 3:
                    so = "s49" if i else "0"
                    k(f"buffer_load_dwordx4 {vr(r,4)}, v16, s[52:55], {so} offen offset:{cb*128}")
                else:
                    for q in range(4): k(f"v_accvgpr_read_b32 v{r+q}, a{184+4*(cb*2+i)+q}")
    c.pre0 = pre; c.pre = lambda k: None
    gemm_main(k, c, boundary)
    A = lambda j, i: c.vacc + 4 * (j * c.MT + i)
    if SPL:
        k(f"""
        s_lshl_b32 s45, s2, 2
        s_add_u32 s45, s45, s42
        s_lshl_b32 s46, s45, 13
        s_add_u32 s47, s46, 4096
        s_lshl_b32 s45, s45, 6
        s_add_u32 s45, s45, 32768
        """)
        XB = P('XB', 1)
        for q in range(4 if XB else 0):
            cvt_pair(k, 144 + 4 * q, A(2*(q>>1), 2+(q&1)), A(2*(q>>1)+1, 2+(q&1)))
            k(f"buffer_store_dwordx4 {vr(144+4*q,4)}, v4, s[56:59], s46 offen offset:{q*1024} sc1")
        for q in range(0 if XB else 8): k(f"buffer_store_dwordx4 {vr(A(q>>1, 2+(q&1)),4)}, v4, s[56:59], s{46+q//4} offen offset:{(q%4)*1024} sc1")
        pw = 1 if P('MAP', 1) else 8
        k(f"v_mov_b32 v29, s45\nv_xor_b32 v30, {256*pw}, v29\nv_mov_b32 v31, 1\ns_xor_b32 s46, s46, {0x8000*pw}\ns_xor_b32 s47, s47, {0x8000*pw}")
        for q in range(4):
            for d in range(4):
                a = A(2*(q>>1) + (d>>1), q&1) + 2*(d&1)
                k(f"v_lshlrev_b32 v18, 16, v{R+4*q+d}\nv_and_b32 v19, 0xffff0000, v{R+4*q+d}\n" + pk("v_pk_add_f32", a, a, 18))
        k("s_mov_b64 exec, 1\ns_waitcnt vmcnt(0)\nbuffer_store_dword v31, v29, s[84:87], 0 offen sc1\ns_nop 0")
        poll(k, 84, 1, 1)
        qs = [0, 1, 2, 3] if XB else [0, 2, 1, 3, 4, 6, 5, 7]
        for q in qs: k(f"buffer_load_dwordx4 {vr(96+4*q,4)}, v4, s[56:59], s{46+q//4} offen offset:{(q%4)*1024} sc1")
        for cb in range(2):
            for i in range(2):
                n = cb * 2 + i
                k(f"s_waitcnt vmcnt({3 if XB else 6 - n})")
                for d in range(4 if XB else 0):
                    a = A(2*cb + (d>>1), i) + 2*(d&1)
                    k(f"v_lshlrev_b32 v18, 16, v{96+4*n+d}\nv_and_b32 v19, 0xffff0000, v{96+4*n+d}\n" + pk("v_pk_add_f32", a, a, 18))
                for hf in range(0 if XB else 2):
                    for h in range(2): k(pk("v_pk_add_f32", A(2*cb+hf, i)+2*h, A(2*cb+hf, i)+2*h, 96+4*(2*(2*cb+hf)+i)+2*h))
                o = 128 + 4 * n
                cvt_pair(k, o, A(2 * cb, i), A(2 * cb + 1, i))
                k(f"s_nop 1\nv_permlane16_swap_b32 v{o}, v{o+2}\nv_permlane16_swap_b32 v{o+1}, v{o+3}")
                k(f"buffer_store_dwordx4 {vr(o,4)}, v16, s[52:55], {'s49' if i else '0'} offen offset:{cb*128}")
        return
    if which == 3:
        for i in range(2): k(f"v_mov_b32 v{20+2*i}, 0\nv_mov_b32 v{21+2*i}, 0")
        for q in range(4): k(f"v_permlane16_swap_b32 v{R+4*q}, v{R+4*q+2}\nv_permlane16_swap_b32 v{R+4*q+1}, v{R+4*q+3}")
    for cb in range(2):
        for i in range(2):
            r = R + 4 * (cb * 2 + i)
            for hf in range(2):
                a = A(2 * cb + hf, i)
                for d in range(2):
                    k(f"v_lshlrev_b32 v18, 16, v{r+2*hf+d}\nv_and_b32 v19, 0xffff0000, v{r+2*hf+d}")
                    k(f"v_add_f32 v{a+2*d}, v{a+2*d}, v18\nv_add_f32 v{a+2*d+1}, v{a+2*d+1}, v19")
            o = 64 + 4 * (cb * 2 + i)
            cvt_pair(k, o, A(2 * cb, i), A(2 * cb + 1, i))
            if which == 3:
                k(f"buffer_store_dwordx4 {vr(o,4)}, v4, s[12:15], s{50+cb} offen offset:{i*1024}{SC}")
                for q in range(4): k(f"v_accvgpr_write_b32 a{184+4*(cb*2+i)+q}, v{o+q}")
                for d in range(4):
                    k(f"v_lshlrev_b32 v18, 16, v{o+d}\nv_and_b32 v19, 0xffff0000, v{o+d}")
                    k(f"v_add_f32 v{20+2*i}, v{20+2*i}, v18\nv_fmac_f32 v{21+2*i}, v18, v18")
                    k(f"v_add_f32 v{20+2*i}, v{20+2*i}, v19\nv_fmac_f32 v{21+2*i}, v19, v19")
            else:
                so = "s49" if i else "0"
                k(f"s_nop 1\nv_permlane16_swap_b32 v{o}, v{o+2}\nv_permlane16_swap_b32 v{o+1}, v{o+3}")
                k(f"buffer_store_dwordx4 {vr(o,4)}, v16, s[52:55], {so} offen offset:{cb*128}")
    if which == 3:
        for op in ("v_permlane16_swap_b32", "v_permlane32_swap_b32"):
            for r in range(4): k(f"v_mov_b32 v{24+r}, v{20+r}")
            k("s_nop 1")
            for r in range(4): k(f"{op} v{20+r}, v{24+r}")
            k("s_nop 1")
            for r in range(4): k(f"v_add_f32 v{20+r}, v{20+r}, v{24+r}")
        k(f"""
        v_lshlrev_b32 v17, 3, v3
        s_lshl_b32 s45, s40, 13
        s_lshl_b32 s46, s41, 10
        s_add_u32 s45, s45, s46
        s_lshl_b32 s46, s44, 9
        s_add_u32 s45, s45, s46
        s_lshl_b32 s46, s43, 8
        s_add_u32 s45, s45, s46
        s_mov_b64 exec, 0xffff
        buffer_store_dwordx2 v[20:21], v17, s[56:59], s45 offen{SC}
        buffer_store_dwordx2 v[22:23], v17, s[56:59], s45 offen offset:128{SC}
        s_mov_b64 exec, -1
        """)

def gen_k4(k, boundary):
    c = G(); c.name, c.st = 'p4', 8
    c.K, c.TM, c.BK, c.NS, c.SUB, c.MT, c.NT, c.WN = 1024, 256, 32, 4, 1, 4, 14, 1
    c.LA, c.vrd, c.frag_agpr = P('LA4', 3), 12, True
    c.wmode, c.LW, c.wstride = "gu", 4, F * 2
    c.slot, c.xm, c.tm = 30720, 2, 4
    c.acc_agpr, c.vacc, c.vfx, c.vfw = False, 32, 0, 32
    c.swap = lambda j: False
    c.span, c.cutg, c.pre_vm = P('SP4', 0.85), 0, 24
    XL = c.slot * c.NS
    def srds(k):
        k("s_cmp_ge_u32 s42, 2\ns_cselect_b32 s34, s74, s72\ns_cselect_b32 s35, s75, s73")
        k.srd(4, PWS, WS_H, S * D * 2)
        k.srd(8, 34, -BIAS, D * F * 2 + BIAS)
        k.srd(12, PWS, WS_ACT, S * F * 2)
        k.srd(52, PWS, WS_ST, S * 128)
        k.srd(56, PWS, WS_CS, 8 * 2 * F * 4)
    c.srds = srds
    def pre(k):
        k(f"""
        s_lshl_b32 s45, s40, 2
        s_add_u32 s45, s45, s42
        s_lshl_b32 s45, s45, 13
        s_add_u32 s47, s45, 4096
        v_lshlrev_b32 v16, 3, v1
        v_cmp_le_u32 vcc, 112, v0
        v_mov_b32 v17, {(F-112)*4}
        s_mul_i32 s46, s41, 448
        v_cndmask_b32 v17, 0, v17, vcc
        v_lshl_add_u32 v17, v0, 2, v17
        """)
        for j in range(16): k(f"buffer_load_dwordx2 {ar(144+2*j,2)}, v16, s[52:55], s{45 if j < 8 else 47} offen offset:{512*(j%8)}{SC}")
        for j in range(8):
            k(f"buffer_load_dword a{176+j}, v17, s[56:59], s46 offen{SC}\ns_add_u32 s46, s46, {2*F*4}")
    c.pre = pre; c.pre0 = lambda k: None
    e0 = ["v_accvgpr_read_b32 v5, a176"]
    for j in range(1, 8): e0 += [f"v_accvgpr_read_b32 v6, a{176+j}", "v_add_f32 v5, v5, v6"]
    e0 += ["v_lshlrev_b32 v6, 2, v0", f"v_add_u32 v6, {XL}, v6", "ds_write_b32 v6, v5"]
    e1 = ["v_accvgpr_read_b32 v18, a144", "v_accvgpr_read_b32 v19, a145"]
    for j in range(1, 16): e1 += [f"v_accvgpr_read_b32 v6, a{144+2*j}", f"v_accvgpr_read_b32 v7, a{145+2*j}", pk("v_pk_add_f32", 18, 18, 6)]
    e3 = f"""v_mul_f32 v18, 0xba800000, v18
    v_mul_f32 v19, 0x3a800000, v19
    v_fma_f32 v19, -v18, v18, v19
    v_max_f32 v19, 0, v19
    v_add_f32 v19, 0x3727c5ac, v19
    v_sqrt_f32 v19, v19
    v_lshlrev_b32 v5, 2, v3
    v_lshlrev_b32 v30, 4, v2
    v_add_u32 v30, {XL}, v30
    v_and_b32 v29, 31, v1
    v_lshlrev_b32 v29, 4, v29
    v_and_b32 v28, 32, v1
    v_lshl_add_u32 v29, v28, 5, v29""".split("\n")
    for i in range(4): e3 += [f"ds_bpermute_b32 v{8+i}, v5, v18 offset:{64*i}", f"ds_bpermute_b32 v{12+i}, v5, v19 offset:{64*i}"]
    gemm_main(k, c, boundary)
    A = lambda j, i: c.vacc + 4 * (j * c.MT + i)
    k.ext(e0 + e1 + e3)
    k(f"""
    s_lshl_b32 s45, s40, 2
    s_add_u32 s45, s45, s42
    s_mul_i32 s45, s45, {112*4096}
    s_mul_i32 s46, s41, 7
    s_waitcnt lgkmcnt(0)
    s_barrier
    """)
    k("ds_read_b128 v[20:23], v30\nds_read_b128 v[24:27], v30 offset:448")
    for i in range(4): k(f"v_rcp_f32 v{16+i}, v{12+i}")
    k("s_nop 0")
    for i in range(4): k(f"v_mul_f32 v{16+i}, 0xbfb8aa3b, v{16+i}")
    for j in range(7):
        k(f"""
        s_add_u32 s47, s46, {j}
        s_lshr_b32 s48, s47, 1
        s_lshl_b32 s48, s48, 12
        s_and_b32 s47, s47, 1
        s_lshl_b32 s47, s47, 9
        s_add_u32 s48, s48, s47
        s_add_u32 s48, s48, s45
        s_waitcnt lgkmcnt(0)
        """)
        for i in range(4):
            for h in range(2):
                k(pk("v_pk_fma_f32", A(j,i)+2*h, 20+2*h, 8+i, A(j,i)+2*h, "b"))
                k(pk("v_pk_fma_f32", A(j+7,i)+2*h, 24+2*h, 8+i, A(j+7,i)+2*h, "b"))
        if j < 6: k(f"ds_read_b128 v[20:23], v30 offset:{64*(j+1)}\nds_read_b128 v[24:27], v30 offset:{448+64*(j+1)}")
        for i in range(4):
            for h in range(2): k(pk("v_pk_mul_f32", A(j,i)+2*h, A(j,i)+2*h, 16+i, None, "b"))
        for i in range(4):
            for r in range(4): k(f"v_exp_f32 v{A(j,i)+r}, v{A(j,i)+r}")
        for i in range(4):
            for h in range(2): k(pk("v_pk_fma_f32", A(j,i)+2*h, A(j,i)+2*h, 12+i, 12+i, "bc"))
        for i in range(4):
            for r in range(4): k(f"v_rcp_f32 v{A(j,i)+r}, v{A(j,i)+r}")
        for i in range(4):
            for h in range(2): k(pk("v_pk_mul_f32", A(j,i)+2*h, A(j,i)+2*h, A(j+7,i)+2*h))
        for ip in range(2):
            a, b = A(j, 2 * ip), A(j, 2 * ip + 1)
            k(f"v_cvt_pk_bf16_f32 v{a}, v{a}, v{a+1}\nv_cvt_pk_bf16_f32 v{a+1}, v{a+2}, v{a+3}")
            k(f"v_cvt_pk_bf16_f32 v{a+2}, v{b}, v{b+1}\nv_cvt_pk_bf16_f32 v{a+3}, v{b+2}, v{b+3}")
        for ip in range(2):
            a = A(j, 2 * ip)
            if ip == 1: k("s_nop 0")
            k(f"v_permlane32_swap_b32 v{a}, v{a+2}\nv_permlane32_swap_b32 v{a+1}, v{a+3}")
            k(f"buffer_store_dwordx4 {vr(a,4)}, v29, s[12:15], s48 offen offset:{ip*2048}{SC}")
```

```python
from common import *
BIAS = 4096
ST = P('ST', '')

class G:
    pass

def gemm_main(k, c, boundary):
    KGS = c.BK // 32; KG = c.K // 32
    PH = KGS // c.SUB
    NS, LA = c.NS, c.LA
    nst = c.K // c.BK
    assert nst % NS == 0 and (NS * PH) % 2 == 0 and LA <= NS
    nA = (c.TM // 64) * KGS
    Wreg = nA * 4096
    L = nA + c.LW
    fr = ar if c.frag_agpr else vr
    acc = (lambda j, i: ar(4 * (j * c.MT + i), 4)) if c.acc_agpr else (lambda j, i: vr(c.vacc + 4 * (j * c.MT + i), 4))
    XF = lambda st, kk, i: c.vfx + ((st * c.SUB + kk) * c.MT + i) * 4
    WF = lambda st, kk, j: c.vfw + ((st * c.SUB + kk) * c.NT + j) * 4
    nWr = 2 if c.wmode == "cb" else 1
    vAd, vWd = 4, 8
    spb = 65536 // c.slot
    nB = (NS + spb - 1) // spb
    araw = getattr(c, 'araw', False)
    splitk = getattr(c, 'splitk', False)
    nAr = 2 if araw else 1
    vAr = lambda sl: c.vrd + (sl // spb) * (nAr + nWr)
    vWr = lambda sl: vAr(sl) + nAr
    so = lambda sl: (sl % spb) * c.slot
    lg = lambda x: x.bit_length() - 1
    k(f"""
    v_lshrrev_b32 v2, 4, v1
    v_and_b32 v3, 15, v1
    s_and_b32 s40, s38, {c.xm-1}
    s_lshl_b32 s40, s40, {lg(c.tm)}
    s_and_b32 s45, s39, {c.tm-1}
    s_add_u32 s40, s40, s45
    s_lshr_b32 s41, s38, {lg(c.xm)}
    s_lshl_b32 s41, s41, {lg(32//c.tm)}
    s_lshr_b32 s45, s39, {lg(c.tm)}
    s_add_u32 s41, s41, s45
    s_lshr_b32 s43, s42, {lg(c.WN)}
    s_and_b32 s44, s42, {c.WN-1}
    v_lshlrev_b32 v{vAd}, 4, v1
    """)
    if c.name in ('p3', 'p5') and P('MAP', 0):
        k("s_and_b32 s40, s38, 2\ns_lshl_b32 s40, s40, 2\ns_and_b32 s45, s39, 7\ns_add_u32 s40, s40, s45\ns_lshl_b32 s40, s40, 1\ns_and_b32 s45, s38, 1\ns_add_u32 s40, s40, s45")
    wpm = 4 // (c.TM // 64)
    if araw:
        k(f"""
        s_lshl_b32 s45, s40, 7
        s_lshl_b32 s46, s42, 5
        s_add_u32 s45, s45, s46
        s_lshl_b32 s16, s45, 11
        s_lshl_b32 s18, s42, 12
        v_lshrrev_b32 v20, 3, v1
        v_lshrrev_b32 v21, 4, v1
        v_and_b32 v22, 7, v1
        v_xor_b32 v21, v21, v22
        v_lshlrev_b32 v20, 11, v20
        v_lshl_add_u32 v14, v21, 4, v20
        v_add_u32 v14, s16, v14
        s_add_u32 s21, s40, s41
        s_and_b32 s94, s21, {15 - P('ROT', 12)}
        s_and_b32 s21, s21, {P('ROT', 12)}
        s_lshl_b32 s16, s21, 7
        v_xor_b32 v15, 64, v14
        v_add_u32 v15, {16384-1024}, v15
        v_add_u32 v16, {2*(16384-1024)}, v14
        v_add_u32 v17, {2*(16384-1024)}, v15
        v_lshrrev_b32 v20, 1, v3
        v_xor_b32 v20, v20, v2
        v_lshlrev_b32 v20, 4, v20
        v_lshl_add_u32 v20, v3, 7, v20
        s_lshl_b32 s45, s43, 13
        v_add_u32 v{vAr(0)}, s45, v20
        v_xor_b32 v{vAr(0)+1}, 64, v{vAr(0)}
        """)
    elif splitk:
        k(f"""
        s_lshr_b32 s45, s42, 1
        s_xor_b32 s45, s45, s40
        s_lshl_b32 s45, s45, 1
        s_and_b32 s21, s40, 1
        s_add_u32 s45, s45, s21
        s_mul_i32 s31, s45, {KG*4096}
        s_and_b32 s46, s42, 1
        s_lshl_b32 s16, s46, 12
        s_lshl_b32 s18, s42, 12
        s_lshl_b32 s45, s43, 11
        v_add_u32 v{vAr(0)}, s45, v{vAd}
        s_mul_i32 s21, s21, {c.K*c.wstride}
        """)
    else:
        k(f"""
        s_lshr_b32 s45, s42, {lg(wpm)}
        s_lshl_b32 s46, s40, {lg(c.TM//64)}
        s_add_u32 s45, s45, s46
        s_mul_i32 s31, s45, {KG*4096}
        s_and_b32 s46, s42, {wpm-1}
        s_mul_i32 s16, s46, {nA*1024}
        s_mul_i32 s18, s42, {nA*1024}
        """)
        if c.TM == 64: wpart = f"s_lshl_b32 s45, s43, {10 + lg(c.MT)}"
        else: wpart = f"s_lshl_b32 s45, s43, {12 + lg(KGS)}"
        k(f"{wpart}\nv_add_u32 v{vAr(0)}, s45, v{vAd}")
    if c.wmode == "cb":
        RGW = c.BK // 32
        k(f"""
        v_lshrrev_b32 v20, 3, v1
        v_and_b32 v21, 7, v1
        v_and_b32 v22, {2 if c.kperm == 2 else 6}, v20
        v_xor_b32 v21, v21, v22
        v_lshlrev_b32 v21, 4, v21
        v_mul_u32_u24 v20, {c.wstride}, v20
        v_add_u32 v20, v20, v21
        """)
        k(f"""
        s_mul_i32 s17, s42, {RGW*8*c.wstride}
        s_mul_i32 s45, s41, {c.colstep}
        s_add_u32 s17, s17, s45
        s_mul_i32 s19, s42, {c.LW*1024}
        s_add_u32 s19, s19, {Wreg}
        """)
        if araw: k(f"v_add_u32 v20, s17, v20\ns_mul_i32 s17, s21, {c.BK*c.wstride}")
        for i in range(c.LW):
            rg, cb = divmod(i, c.NCB)
            if c.kperm == 2 and rg == 1 and cb == 0: k("v_xor_b32 v20, 64, v20")
            k(f"v_add_u32 v{vWd+i}, {BIAS + rg*8*c.wstride + cb*c.cbstride - (i%4)*1024}, v20")
        rdsetup = f"""
        v_lshrrev_b32 v20, 2, v1
        v_and_b32 v20, 7, v20
        v_lshrrev_b32 v21, 1, v20
        s_lshl_b32 s45, s44, 1
        v_xor_b32 v21, s45, v21
        v_lshlrev_b32 v21, 5, v21
        v_lshlrev_b32 v20, 7, v20
        v_lshrrev_b32 v22, 5, v1
        v_mul_u32_u24 v22, {c.NCB*1024*(2 if c.kperm else 1)}, v22
        v_add_u32 v20, v20, v22
        v_and_b32 v22, 3, v1
        v_lshl_add_u32 v20, v22, 3, v20
        v_add_u32 v20, {Wreg}, v20
        v_add_u32 v{vWr(0)}, v20, v21
        v_xor_b32 v21, 32, v21
        v_add_u32 v{vWr(0)+1}, v20, v21
        """
        if c.kperm == 2:
            rdsetup = f"""
            v_lshrrev_b32 v20, 2, v1
            v_and_b32 v22, 3, v20
            v_lshrrev_b32 v21, 1, v20
            v_and_b32 v21, 3, v21
            s_lshl_b32 s45, s44, 1
            v_xor_b32 v21, s45, v21
            v_lshlrev_b32 v21, 5, v21
            v_lshlrev_b32 v20, 7, v22
            v_mul_u32_u24 v22, {c.NCB*1024}, v2
            v_add_u32 v20, v20, v22
            v_and_b32 v22, 3, v1
            v_lshl_add_u32 v20, v22, 3, v20
            v_add_u32 v20, {Wreg}, v20
            v_add_u32 v{vWr(0)}, v20, v21
            v_xor_b32 v21, 32, v21
            v_add_u32 v{vWr(0)+1}, v20, v21
            """
        def wread(sl, st, kk_s, kk, j, half):
            cb, uu = divmod(j, 2)
            if c.kperm == 2: return f"ds_read_b64_tr_b16 {fr(WF(st,kk,j)+2*half,2)}, v{vWr(sl)+uu} offset:{so(sl)+(4*kk_s*c.NCB+cb)*1024+half*512}"
            return f"ds_read_b64_tr_b16 {fr(WF(st,kk,j)+2*half,2)}, v{vWr(sl)+uu} offset:{so(sl)+((4*kk_s+(1 if c.kperm else 2)*half)*c.NCB+cb)*1024}"
    else:
        k(f"""
        s_and_b32 s45, s42, 1
        s_mul_i32 s45, s45, 192
        v_add_u32 v20, s45, v1
        s_mov_b32 s46, 0x12492493
        """)
        for i in range(4):
            k(f"""
            v_add_u32 v21, {64*i}, v20
            v_mul_hi_u32 v22, v21, s46
            v_mul_u32_u24 v23, 14, v22
            v_sub_u32 v21, v21, v23
            v_mul_u32_u24 v22, {c.wstride}, v22
            v_lshl_add_u32 v22, v21, 4, v22
            v_add_u32 v{vWd+i}, {BIAS - i*1024}, v22
            """)
        k(f"""
        s_mul_i32 s17, s41, 224
        s_lshr_b32 s46, s42, 1
        s_mul_i32 s46, s46, 7168
        s_lshl_b32 s45, s45, 4
        s_add_u32 s19, s45, s46
        s_add_u32 s19, s19, {Wreg}
        """)
        rdsetup = f"""
        v_lshrrev_b32 v20, 2, v1
        v_mul_u32_u24 v20, 224, v20
        v_and_b32 v21, 3, v1
        v_lshl_add_u32 v20, v21, 3, v20
        v_add_u32 v{vWr(0)}, {Wreg}, v20
        """
        def wread(sl, st, kk_s, kk, j, half):
            return f"ds_read_b64_tr_b16 {fr(WF(st,kk,j)+2*half,2)}, v{vWr(sl)} offset:{so(sl) + half*16*224 + (j%7)*32 + (j//7)*7168}"
    def xread(sl, st, kk_s, kk, i):
        if araw: return f"ds_read_b128 {fr(XF(st,kk,i),4)}, v{vAr(sl)+kk_s} offset:{so(sl)+i*2048}"
        if splitk: return f"ds_read_b128 {fr(XF(st,kk,i),4)}, v{vAr(sl)} offset:{so(sl)+(i>>1)*8192+kk_s*4096+(i&1)*1024}"
        return f"ds_read_b128 {fr(XF(st,kk,i),4)}, v{vAr(sl)} offset:{so(sl)+(kk_s*4+i)*1024}"
    def reads(sl, st, ph):
        out = []
        for kk in range(c.SUB):
            kk_s = ph * c.SUB + kk
            out += [xread(sl, st, kk_s, kk, i) for i in range(c.MT)]
            for j in range(c.NT): out += [wread(sl, st, kk_s, kk, j, 0), wread(sl, st, kk_s, kk, j, 1)]
        return out
    def dmaA(sl):
        if araw:
            return [f"s_add_u32 m0, s18, {sl*c.slot}", f"s_add_u32 s16, s16, 128\ns_and_b32 s16, s16, 2047"] + \
                   [f"buffer_load_dwordx4 v{14+i}, s[4:7], s16 offen offset:{i*1024} lds" for i in range(4)]
        return [f"s_add_u32 m0, s18, {sl*c.slot}", f"s_add_u32 s16, s16, {KGS*4096}"] + \
               [f"buffer_load_dwordx4 v{vAd}, s[4:7], s16 offen offset:{i*1024}{SC} lds" for i in range(nA)]
    def dmaW(sl):
        o = []
        for i in range(c.LW):
            if i % 4 == 0:
                o += [f"s_add_u32 m0, s19, {sl*c.slot + i*1024}", "s_nop 0" if i else f"s_add_u32 s17, s17, {c.BK*c.wstride}"]
                if araw and i == 0: o += [f"s_cmp_eq_u32 s17, {c.K*c.wstride}\ns_cselect_b32 s17, 0, s17"]
            o += [f"buffer_load_dwordx4 v{vWd+i}, s[8:11], s17 offen offset:{(i%4)*1024} lds"]
        return o
    def dma(sl): return dmaA(sl) + dmaW(sl)
    k(f"s_sub_u32 s17, s17, {c.BK*c.wstride}\ns_sub_u32 s16, s16, {128 if araw else KGS*4096}")
    c.srds(k)
    if splitk: k("s_add_u32 s17, s17, s21\ns_add_u32 s10, s10, s21")
    if not araw: k(f"s_add_u32 s4, s4, s31\ns_addc_u32 s5, s5, 0\ns_mov_b32 s6, {KG*4096}")
    def split(sl):
        return (dmaA(sl), dmaW(sl)) if PH == 2 else (dma(sl), [])
    nWpre = LA - 1 if PH == 2 else LA
    def idle():
        for s in range(nWpre): k.ext(dmaW(s))
        k(rdsetup)
        for b in range(1, nB):
            for r in range(nAr + nWr): k(f"v_add_u32 v{c.vrd+b*(nAr+nWr)+r}, {b*spb*c.slot}, v{c.vrd+r}")
        for j in range(c.NT):
            for i in range(c.MT):
                for r in range(4):
                    k(f"v_accvgpr_write_b32 a{4*(j*c.MT+i)+r}, 0" if c.acc_agpr else f"v_mov_b32 v{c.vacc+4*(j*c.MT+i)+r}, 0")
        c.pre0(k)
    if araw:
        nWpre = 0
        for s in range(LA):
            k.ext(dma(s) if s < LA - 1 else dmaA(s))
            if s == P('IDL', 0): idle()
            if s == P('WRM', 0) and P('PAD', 999) < 999:
                k("s_mov_b64 exec, 0")
                for w in range(3): k(f"s_cmp_eq_u32 s42, {w}\ns_cbranch_scc1 {k.lab(f'pad{w}_0')}")
                k(f"s_branch {k.lab('pad3_0')}\n{k.lab('padret')}:\ns_mov_b64 exec, -1")
        if not P('ITS', 0): k.stamp(1)
        k(f"s_waitcnt vmcnt({(LA-2)*L + nA})")
        c.pre(k)
        k("s_barrier")
    else:
        boundary(0, idle)
        for s in range(LA):
            if s == LA - 1: c.pre(k)
            k.ext(dmaA(s))
        k(f"s_waitcnt vmcnt({nA + c.pre_vm})\ns_barrier")
    k.stamp(c.st)
    k.ext(reads(0, 0, 0))
    k(f"s_mov_b32 s20, {nst // NS}\ns_waitcnt lgkmcnt(0)")
    nloop = len(k.L); ctx = {}
    k.label(c.name + "loop")
    if P('ITS', 0) and c.name == P('ITP', 'p1'):
        k(f"s_cmp_eq_u32 s20, {P('ITS', 0)}\ns_cbranch_scc0 {k.lab('its')}"); k.stamp(1); k.label("its")
    for p in range(NS * PH):
        sl, ph = divmod(p, PH)
        st = p % 2
        lastph = ph == PH - 1
        mf = []
        for kk in range(c.SUB):
            for j in range(c.NT):
                for i in range(c.MT):
                    a, b = fr(WF(st, kk, j), 4), fr(XF(st, kk, i), 4)
                    if c.swap(j): a, b = b, a
                    mf.append(f"v_mfma_f32_16x16x32_bf16 {acc(j,i)}, {a}, {b}, {acc(j,i)}")
        if lastph:
            rd = reads((sl + 1) % NS, 1 - st, 0)
            k(mf[0]); mf = mf[1:]
            if araw:
                alts = c.alt.get(sl, [])
                for cond, ex in alts: k(f"{cond}\ns_cbranch_scc1 {k.lab(f'alt{sl}{ex}')}")
                k(f"s_waitcnt vmcnt({(LA-2)*L})")
                for cond, ex in alts: k(f"{k.lab(f'alt{sl}{ex}')}:\ns_waitcnt vmcnt({(LA-2)*L + ex})")
                k("s_barrier")
                for cond, nm in c.hooks[sl]:
                    k(mf[0]); mf = mf[1:]
                    if nm in c.merged: ctx[nm] = (sl, mf, rd, split((sl + LA) % NS)[0])
                    k(f"{cond}\ns_cbranch_scc1 {k.lab(nm)}\n{k.lab(f'{nm}r{sl}')}:")
                if sl == 1: k(mf[0]); mf = mf[1:]
                if sl == 1: k("s_cmp_eq_u32 s20, 1\ns_cselect_b32 s6, 0, s6\ns_cselect_b32 s10, 0, s10")
            else: k(f"s_waitcnt vmcnt({(LA-2)*L})\ns_barrier")
            fill = merge(rd, split((sl + LA) % NS)[0])
        else:
            rd = reads(sl, 1 - st, ph + 1)
            p2 = split((sl + LA - 1) % NS)[1]
            fill = merge(rd, p2) if p2 else rd
        if p in getattr(c, 'extra', {}): fill = merge(fill, c.extra[p])
        body = interleave(mf, fill, span=c.span)
        if p == NS * PH - 1:
            body.insert(len(body) - 2, "s_sub_u32 s20, s20, 1"); body.insert(len(body) - 1, "s_cmp_lg_u32 s20, 0")
        k.ext(body)
        if araw and lastph: k.label(f"phend{sl}")
        k("s_waitcnt lgkmcnt(0)")
    if araw:
        looptxt = k.L[nloop:]; del k.L[nloop:]
        k(f"s_branch {k.lab(c.name + 'loop')}")
        for w, chain in enumerate(c.chains):
            n0 = len(k.L)
            for nm, body, ret in chain:
                k.label(nm)
                if nm in ctx:
                    sl, mfr, rd, dm = ctx[nm]
                    ex = body(k, XF, WF)
                    if nm == 'red2': rd = []
                    if nm in ('red1', 'red2'): dm = []
                    k.ext(interleave(mfr, merge(*[x for x in (rd, dm, ex) if x]), span=0.95))
                    if sl == NS - 1: k("s_sub_u32 s20, s20, 1\ns_cmp_lg_u32 s20, 0")
                    k(f"s_branch {k.lab(f'phend{sl}')}")
                else:
                    body(k, XF, WF); k(ret)
            txt = k.L[n0:]; del k.L[n0:]
            step = P('PAD', 999); np_ = (len(txt) + step - 1) // step
            for q in range(np_):
                if step < 999: k(f"{k.lab(f'pad{w}_{q}')}:\ns_cbranch_execz {k.lab(f'pad{w}_{q+1}' if q + 1 < np_ else 'padret')}")
                k.L += txt[q*step:(q+1)*step]
        k.L += looptxt
    k(f"s_cbranch_scc1 {k.lab(c.name + 'loop')}")
    k("s_waitcnt vmcnt(0)\ns_barrier\ns_nop 5")
    k.stamp(c.st + 1)

def cvt_pair(k, dst, a, b):
    k(f"v_cvt_pk_bf16_f32 v{dst}, v{a}, v{a+1}\nv_cvt_pk_bf16_f32 v{dst+1}, v{a+2}, v{a+3}")
    k(f"v_cvt_pk_bf16_f32 v{dst+2}, v{b}, v{b+1}\nv_cvt_pk_bf16_f32 v{dst+3}, v{b+2}, v{b+3}")

def head(k, n):
    k(f"s_cmp_ge_u32 s2, {n}\ns_cbranch_scc1 {k.lab('end')}")

def pk(op, d, a, b, cc=None, bc=""):
    ops = [("a", a), ("b", b)] + ([("c", cc)] if cc is not None else [])
    txt, sel, selh = [], [], []
    for nm, r in ops:
        if nm in bc:
            txt.append(vr(r & ~1, 2)); sel.append(r & 1); selh.append(r & 1)
        else:
            txt.append(vr(r, 2)); sel.append(0); selh.append(1)
    return f"{op} {vr(d,2)}, {', '.join(txt)} op_sel:[{','.join(map(str,sel))}] op_sel_hi:[{','.join(map(str,selh))}]"

def gen_k1(k, poll):
    c = G(); c.name, c.st, c.kperm, c.araw = 'p1', 2, 2, True
    c.K, c.TM, c.BK, c.NS, c.SUB, c.MT, c.NT, c.WN = 1024, 128, 64, 4, 1, 4, 6, 2
    c.LA, c.vrd, c.frag_agpr = 3, 208, False
    c.wmode, c.NCB, c.LW, c.wstride, c.cbstride, c.colstep = "cb", 3, 6, 6144, 2048, 128
    c.slot, c.xm, c.tm = 40960, 2, 8
    c.acc_agpr, c.vacc, c.vfx, c.vfw = False, 32, 128, 160
    c.swap = lambda j: j >= 4
    c.span, c.cutg = P('SP1', 0.85), 0
    def srds(k):
        k("s_waitcnt lgkmcnt(0)")
        k.srd(4, PX, 0, S * D * 2)
        k.srd(8, PWQKV, -BIAS, D * 3 * D * 2 + BIAS)
        k.srd(84, PWS, WS_CNT, 128 * 256 + 1024 * 64)
        k(f"""
        s_lshl_b32 s47, s2, 2
        s_add_u32 s47, s47, s42
        s_cmp_lg_u32 s47, 3
        s_cbranch_scc1 {k.lab('noinit')}
        v_lshlrev_b32 v20, 8, v1
        v_mov_b32 v21, 0
        s_mov_b32 s45, 16384
        buffer_store_dword v21, v20, s[84:87], 0 offen sc1
        buffer_store_dword v21, v20, s[84:87], s45 offen sc1
        {k.lab('noinit')}:
        """)
    c.srds = srds
    def pre0(k):
        k.srd(12, PWS, WS_Q, 12 * MB)
        k.srd(88, PDBG, 0, 256)
        k.srd(52, PWS, WS_XN, 16 * 16384)
        k.srd(56, PWS, WS_XN + MB, 16 * 16384)
        k.srd(60, PWO, 0, D * D * 2)
        for r in range(4): k(f"v_mov_b32 v{20+r}, 0x3f803f80")
        k("v_and_b32 v24, 3, v1")
        for q in range(3): k(f"v_cmp_eq_u32 {sr(22+2*q,2)}, {q+1}, v2\nv_cmp_eq_u32 {sr(28+2*q,2)}, {q+1}, v24")
        k(f"""
        v_and_b32 v24, 31, v1
        v_lshrrev_b32 v25, 5, v1
        v_lshlrev_b32 v24, 2, v24
        v_lshl_add_u32 v24, v25, 12, v24
        v_lshlrev_b32 v25, 4, v3
        s_lshl_b32 s48, s40, 14
        s_lshl_b32 s45, s43, 13
        s_lshl_b32 s50, s41, 8
        s_lshl_b32 s46, s44, 7
        s_add_u32 s48, s48, s45
        s_add_u32 s46, s46, s50
        s_add_u32 s48, s48, s46
        s_lshl_b32 s49, s41, 14
        s_lshl_b32 s51, s40, 10
        s_lshl_b32 s45, s42, 8
        s_add_u32 s49, s49, s51
        s_add_u32 s49, s49, s45
        v_lshl_add_u32 v28, v2, 12, v25
        s_lshl_b32 s45, s42, 16
        s_add_u32 s50, s50, s45
        s_add_u32 s51, s51, s45
        v_bfe_u32 v26, v0, 5, 2
        v_lshl_add_u32 v27, v26, 8, v25
        v_and_b32 v26, 1, v2
        v_lshl_add_u32 v27, v26, 3, v27
        v_add_u32 v27, {2 * c.slot + 16384}, v27
        v_mov_b32 v30, 0
        v_mov_b32 v31, 1
        s_sub_u32 s45, s41, s40
        s_add_u32 s45, s45, 64
        v_and_b32 v19, 1, v1
        v_mul_u32_u24 v19, s45, v19
        v_add_lshl_u32 v19, v19, s40, 8
        v_and_b32 v18, 0xc0, v0
        v_lshlrev_b32 v18, 2, v18
        s_cmp_eq_u32 s42, 0
        s_cselect_b32 s93, 3, 2
        s_mov_b32 s34, 0x00f0000f
        s_mov_b32 s35, 0xf0000f00
        """)
    c.pre0 = pre0
    c.pre = lambda k: k(f"""
        s_cmp_lg_u32 s47, 3
        s_cbranch_scc1 {k.lab('noinit2')}
        s_mov_b64 exec, 1
        buffer_store_dword v31, v30, s[88:91], 0 offen sc1
        s_mov_b64 exec, -1
        {k.lab('noinit2')}:
        """)
    EX = 2 * c.slot + 16384
    def sums(k, XF, WF):
        for st in range(2):
            cc = lambda a: ar(a, 4) if st else "0"
            for j in range(6): k(f"v_mfma_f32_16x16x32_bf16 {ar(4*j,4)}, v[20:23], {vr(WF(st,0,j),4)}, {cc(4*j)}")
            for i in range(4):
                x = vr(XF(st, 0, i), 4)
                k(f"v_mfma_f32_16x16x32_bf16 {ar(24+4*i,4)}, v[20:23], {x}, {cc(24+4*i)}")
                k(f"v_mfma_f32_16x16x32_bf16 {ar(40+4*i,4)}, {x}, {x}, {cc(40+4*i)}")
        k("s_mov_b32 s45, s94\ns_mov_b32 s94, 7")
        for sl in range(3): k(f"s_cmp_eq_u32 s45, {sl}\ns_cbranch_scc1 {k.lab(f'sumsr{sl}')}")
    def publish(k, XF, WF):
        e = k.lab('pub')
        o = [f"v_accvgpr_read_b32 v{224+j}, a{4*j}" for j in range(6)]
        t = f"s_cmp_eq_u32 s44, 0\ns_cbranch_scc1 {e}a\n"
        for wn in (1, 0):
            for q in range(2):
                t += f"v_accvgpr_read_b32 v{232+2*q}, a{24+4*(2*wn+q)}\nv_accvgpr_read_b32 v{233+2*q}, a{40+4*(2*wn+q)}\n"
                for r in range(1, 4): t += f"v_accvgpr_read_b32 v{236+4*q+r}, a{40+4*(2*wn+q)+r}\n"
            t += f"s_branch {e}b\n{e}a:\n" if wn else f"{e}b:"
        o += [t, "s_cmp_eq_u32 s43, 0\ns_cselect_b64 vcc, 0, -1", "v_cndmask_b32 v228, v228, v229, s[22:23]"]
        for q in range(3):
            o += [f"v_cndmask_b32 v224, v224, v{225+q}, {sr(22+2*q,2)}", f"v_cndmask_b32 v233, v233, v{237+q}, {sr(28+2*q,2)}",
                  f"v_cndmask_b32 v235, v235, v{241+q}, {sr(28+2*q,2)}"]
        return o + ["v_cndmask_b32 v224, v224, v228, vcc", "s_lshl_b32 s45, s2, 13", "v_lshlrev_b32 v26, 4, v0",
            "buffer_store_dword v224, v24, s[56:59], s48 offen sc1",
            "s_mov_b64 exec, s[34:35]\nbuffer_store_dwordx4 v[232:235], v25, s[52:55], s49 offen sc1\ns_mov_b64 exec, -1\ns_nop 1",
            "s_lshl_b32 s46, s47, 6", "s_add_u32 s46, s46, 32768",
            "s_mov_b64 exec, 1\nbuffer_store_dword v30, v30, s[84:87], s46 offen sc1\ns_mov_b64 exec, -1\ns_nop 1",
            "buffer_load_dword v29, v18, s[88:91], 0 offen sc1", "buffer_load_dwordx4 a[100:103], v26, s[60:63], s45 offen",
            "s_add_u32 s45, s45, 4096", "buffer_load_dwordx4 a[104:107], v26, s[60:63], s45 offen"]
    def signal(k, XF, WF):
        k(f"s_cmp_eq_u32 s20, 2\ns_cbranch_scc1 {k.lab('look')}")
        k(f"v_readfirstlane_b32 s45, v29\ns_cmp_eq_u32 s45, 1\ns_cbranch_scc1 {k.lab('sigi')}")
        poll(k, 88, 1, 1)
        k(f"""
        {k.lab('sigi')}:
        v_mov_b32 v31, 1
        s_mov_b64 exec, 3
        buffer_atomic_add v31, v19, s[84:87], 0 offen sc1
        s_mov_b64 exec, -1
        """)
    def look(k, XF, WF): k("v_mov_b32 v30, v19\nbuffer_load_dword v18, v19, s[84:87], 0 offen sc1")
    def fetch(k, XF, WF):
        k(f"v_cmp_gt_u32 vcc, 16, v18\ns_and_b64 vcc, vcc, exec\ns_cbranch_scc0 {k.lab('feg')}")
        poll(k, 84, 3, 16)
        k(f"{k.lab('feg')}:")
        o = []
        for j in range(4):
            o += [f"buffer_load_dwordx4 {vr(224+4*j,4)}, v4, s[52:55], s51 offen sc1", "s_add_u32 s51, s51, 16384",
                  f"buffer_load_dwordx4 {vr(240+4*j,4)}, v28, s[56:59], s50 offen sc1", "s_add_u32 s50, s50, 16384"]
        return o
    def red1(k, XF, WF):
        o = [pk("v_pk_add_f32", b+j, b+j, b+j+h) for h in (8, 4) for b in (224, 240) for j in range(0, h, 2)]
        return o + ["v_lshlrev_b32 v26, 4, v0", f"v_add_u32 v26, {EX}, v26", "ds_write_b128 v26, v[224:227] offset:2048", "ds_write_b128 v26, v[240:243] offset:6144",
                    "v_lshlrev_b32 v20, 2, v0", "v_and_b32 v21, 0x1fc, v20", f"v_add_u32 v20, {EX}, v20", f"v_add_u32 v21, {EX}, v21"]
    def red2(k, XF, WF):
        k("ds_read2st64_b64 v[224:227], v27 offset0:4 offset1:6\nds_read2st64_b64 v[228:231], v27 offset0:8 offset1:10")
        k("ds_read2st64_b32 v[240:241], v20 offset0:24 offset1:28\nds_read2st64_b32 v[242:243], v20 offset0:32 offset1:36")
        return f"""s_lshl_b32 s45, s44, 7
        s_lshl_b32 s46, s43, 8
        s_add_u32 s45, s45, {EX}
        s_add_u32 s46, s46, {EX}
        v_lshl_add_u32 v22, v2, 4, s45
        v_lshl_add_u32 v23, v3, 2, s45
        v_lshl_add_u32 v24, v3, 2, s46
        v_lshl_add_u32 v25, v2, 4, s46
        s_waitcnt lgkmcnt(0)
        {pk("v_pk_add_f32", 224, 224, 226)}
        {pk("v_pk_add_f32", 228, 228, 230)}
        {pk("v_pk_add_f32", 240, 240, 242)}
        {pk("v_pk_add_f32", 224, 224, 228)}
        v_add_f32 v240, v240, v241
        v_mul_f32 v224, 0xba800000, v224
        v_mul_f32 v225, 0x3a800000, v225
        ds_write_b32 v20, v240
        v_fma_f32 v225, -v224, v224, v225
        v_max_f32 v225, 0, v225
        v_add_f32 v225, 0x3727c5ac, v225
        v_rsq_f32 v225, v225
        s_nop 0
        ds_write2st64_b32 v21, v224, v225 offset0:4 offset1:6""".split("\n")
    c.merged = ("publish", "fetch", "red1", "red2")
    it = lambda n: f"s_cmp_eq_u32 s20, {n}"
    c.hooks = {sl: [(f"s_cmp_eq_u32 s94, {sl}", "sums")] for sl in range(4)}
    c.hooks[0] += [(it(3), "publish"), (it(1), "fetch")]
    c.hooks[2] += [(it('s93'), "signal"), (it(1), "red1")]
    c.hooks[3] += [(it(1), "red2")]
    br = lambda n: f"s_branch {k.lab(n)}"
    c.chains = [[("sums", sums, br("sumsr3")), ("red2", red2, br("red2r3"))], [("publish", publish, br("publishr0"))],
                [("signal", signal, br("signalr2")), ("look", look, br("signalr2")), ("fetch", fetch, br("fetchr0"))],
                [("red1", red1, br("red1r2"))]]
    c.alt = {1: [(it(3), 6), (it(1), 8)], 3: [(it('s93') + "\ns_cselect_b32 s93, 2, s93", 1)]}
    gemm_main(k, c, None)
    A = lambda j, i: c.vacc + 4 * (j * c.MT + i)
    CSQ, TS, CSV, TV = 128, 144, 152, 160
    for j in range(4): k(f"ds_read_b128 {vr(CSQ+4*j,4)}, v22 offset:{(j//2)*256 + (j%2)*64}")
    for i in range(4): k(f"ds_read_b32 v{TS+i}, v24 offset:{1024+64*i}\nds_read_b32 v{TS+4+i}, v24 offset:{1536+64*i}")
    k("s_waitcnt lgkmcnt(0)")
    for jd in range(2): k(f"ds_read_b32 v{CSV+jd}, v23 offset:{512+64*jd}")
    for i in range(4): k(f"ds_read_b128 {vr(TV+8*i,4)}, v25 offset:{1024+64*i}\nds_read_b128 {vr(TV+8*i+4,4)}, v25 offset:{1536+64*i}")
    for i in range(4): k(f"v_mul_f32 v{192+i}, 0x3e8293ee, v{TS+4+i}")
    for j in (2, 3, 0, 1):
        for i in range(4):
            for h in range(2): k(pk("v_pk_fma_f32", A(j,i)+2*h, CSQ+4*j+2*h, TS+i, A(j,i)+2*h, "b"))
        for i in range(4):
            for h in range(2): k(pk("v_pk_mul_f32", A(j,i)+2*h, A(j,i)+2*h, (192 if j < 2 else TS+4)+i, None, "b"))
    k("s_waitcnt lgkmcnt(0)")
    for jd in range(2):
        for i in range(4):
            for h in range(2): k(pk("v_pk_fma_f32", A(4+jd,i)+2*h, TV+8*i+2*h, CSV+jd, A(4+jd,i)+2*h, "b"))
        for i in range(4):
            for h in range(2): k(pk("v_pk_mul_f32", A(4+jd,i)+2*h, A(4+jd,i)+2*h, TV+8*i+4+2*h))
    k(f"""
    s_lshl_b32 s45, s41, 1
    s_add_u32 s45, s45, s44
    s_lshl_b32 s46, s40, 2
    s_lshl_b32 s47, s43, 1
    s_add_u32 s46, s46, s47
    s_lshl_b32 s45, s45, 6
    s_add_u32 s45, s45, s46
    s_lshl_b32 s46, s45, 11
    s_lshl_b32 s47, s45, 12
    s_add_u32 s47, s47, {WS_KV - WS_Q}
    s_mov_b32 s48, 0x3e8293ee
    """)
    k("""
    v_lshlrev_b32 v10, 9, v2
    v_lshl_add_u32 v11, v3, 4, v10
    v_and_b32 v12, 7, v3
    v_lshlrev_b32 v12, 4, v12
    v_and_b32 v13, 8, v3
    v_lshl_add_u32 v12, v13, 5, v12
    v_add_u32 v12, v12, v10
    """)
    for i in range(4):
        cvt_pair(k, 128 + 4 * i, A(0, i), A(1, i))
        k(f"buffer_store_dwordx4 {vr(128+4*i,4)}, v11, s[12:15], s46 offen offset:{(i//2)*2048 + (i%2)*256}{SC}")
    k("s_add_u32 s49, s47, 4096")
    for i in range(4):
        cvt_pair(k, 144 + 4 * i, A(2, i), A(3, i))
        k(f"buffer_store_dwordx4 {vr(144+4*i,4)}, v12, s[12:15], s{47 if i < 2 else 49} offen offset:{(i%2)*128}{SC}")
    for jd in range(2):
        for ii in range(2):
            cvt_pair(k, 160 + 4 * (2 * jd + ii), A(4 + jd, 2 * ii), A(4 + jd, 2 * ii + 1))
            k(f"buffer_store_dwordx4 {vr(160+4*(2*jd+ii),4)}, v11, s[12:15], s{47 if ii == 0 else 49} offen offset:{2048 + jd*256}{SC}")

def gen_k35(k, boundary, which, poll=None):
    c = G(); c.name, c.st, c.kperm = f'p{which}', 6 if which == 3 else 10, which == 5
    c.K = 1024 if which == 3 else F
    c.TM, c.BK, c.NS, c.SUB, c.MT, c.NT, c.WN = 64, 64, 4, 2, 2, 4, 2
    c.LA, c.vrd, c.frag_agpr = P('LA5', 4), 24, False
    c.wmode, c.NCB, c.LW, c.wstride, c.cbstride, c.colstep = "cb", 2, 4, 2048, 128, 256
    c.slot, c.xm, c.tm = 24576, 4, 8
    c.acc_agpr, c.vacc, c.vfx, c.vfw = False, 32, 64, 96
    c.swap = lambda j: False
    c.span, c.cutg = P('SP5', 0.8), 1
    c.pre_vm = 0
    SPL = which == 5 and P('SPLIT', 1)
    if SPL:
        c.splitk, c.K, c.TM, c.MT, c.slot, c.vfx, c.vfw = True, F // 2, 128, 4, 32768, 96, 160
        c.SUB, c.LA, c.span = P('SUB5', 2), P('LA5S', 4), P('SP5S', 0.8)
    def srds(k):
        k.srd(4, PWS, WS_O if which == 3 else WS_ACT, S * c.K * 2)
        k.srd(8, PWO if which == 3 else PWD, -BIAS, c.K * D * 2 + BIAS)
        k.srd(12, PWS, WS_H, S * D * 2)
        k.srd(52, PX if which == 3 else POUT, 0, S * D * 2)
        if which == 3: k.srd(56, PWS, WS_ST, S * 128)
        if SPL: k.srd(56, PWS, WS_KV, 8 * MB)
    c.srds = srds
    R = 224 if SPL else 160
    def pre(k):
        k(f"""
        s_lshl_b32 s45, s40, 6
        s_lshl_b32 s46, s43, 5
        s_add_u32 s45, s45, s46
        v_add_u32 v17, s45, v3
        v_lshlrev_b32 v16, 11, v17
        s_lshl_b32 s45, s41, 8
        s_lshl_b32 s46, s44, 6
        s_add_u32 s45, s45, s46
        v_and_b32 v18, 1, v2
        v_lshl_add_u32 v16, v18, 5, v16
        v_lshrrev_b32 v18, 1, v2
        v_lshl_add_u32 v16, v18, 4, v16
        v_add_u32 v16, s45, v16
        s_lshl_b32 s45, s40, 5
        s_lshl_b32 s46, s41, 2
        s_add_u32 s45, s45, s46
        s_add_u32 s45, s45, s44
        s_lshl_b32 s45, s45, 12
        s_lshl_b32 s46, s43, 11
        s_add_u32 s50, s45, s46
        s_add_u32 s51, s50, 8192
        s_mov_b32 s49, 32768
        """)
        for cb in range(2):
            for i in range(2):
                r = R + 4 * (cb * 2 + i)
                if which == 3:
                    so = "s49" if i else "0"
                    k(f"buffer_load_dwordx4 {vr(r,4)}, v16, s[52:55], {so} offen offset:{cb*128}")
                else:
                    for q in range(4): k(f"v_accvgpr_read_b32 v{r+q}, a{184+4*(cb*2+i)+q}")
    c.pre0 = pre; c.pre = lambda k: None
    gemm_main(k, c, boundary)
    A = lambda j, i: c.vacc + 4 * (j * c.MT + i)
    if SPL:
        k(f"""
        s_lshl_b32 s45, s2, 2
        s_add_u32 s45, s45, s42
        s_lshl_b32 s46, s45, 13
        s_add_u32 s47, s46, 4096
        s_lshl_b32 s45, s45, 6
        s_add_u32 s45, s45, 32768
        """)
        XB = P('XB', 1)
        for q in range(4 if XB else 0):
            cvt_pair(k, 144 + 4 * q, A(2*(q>>1), 2+(q&1)), A(2*(q>>1)+1, 2+(q&1)))
            k(f"buffer_store_dwordx4 {vr(144+4*q,4)}, v4, s[56:59], s46 offen offset:{q*1024} sc1")
        for q in range(0 if XB else 8): k(f"buffer_store_dwordx4 {vr(A(q>>1, 2+(q&1)),4)}, v4, s[56:59], s{46+q//4} offen offset:{(q%4)*1024} sc1")
        pw = 1 if P('MAP', 0) else 8
        k(f"v_mov_b32 v29, s45\nv_xor_b32 v30, {256*pw}, v29\nv_mov_b32 v31, 1\ns_xor_b32 s46, s46, {0x8000*pw}\ns_xor_b32 s47, s47, {0x8000*pw}")
        for q in range(4):
            for d in range(4):
                a = A(2*(q>>1) + (d>>1), q&1) + 2*(d&1)
                k(f"v_lshlrev_b32 v18, 16, v{R+4*q+d}\nv_and_b32 v19, 0xffff0000, v{R+4*q+d}\n" + pk("v_pk_add_f32", a, a, 18))
        k("s_mov_b64 exec, 1\ns_waitcnt vmcnt(0)\nbuffer_store_dword v31, v29, s[84:87], 0 offen sc1\ns_nop 0")
        poll(k, 84, 1, 1)
        qs = [0, 1, 2, 3] if XB else [0, 2, 1, 3, 4, 6, 5, 7]
        for q in qs: k(f"buffer_load_dwordx4 {vr(96+4*q,4)}, v4, s[56:59], s{46+q//4} offen offset:{(q%4)*1024} sc1")
        for cb in range(2):
            for i in range(2):
                n = cb * 2 + i
                k(f"s_waitcnt vmcnt({3 if XB else 6 - n})")
                for d in range(4 if XB else 0):
                    a = A(2*cb + (d>>1), i) + 2*(d&1)
                    k(f"v_lshlrev_b32 v18, 16, v{96+4*n+d}\nv_and_b32 v19, 0xffff0000, v{96+4*n+d}\n" + pk("v_pk_add_f32", a, a, 18))
                for hf in range(0 if XB else 2):
                    for h in range(2): k(pk("v_pk_add_f32", A(2*cb+hf, i)+2*h, A(2*cb+hf, i)+2*h, 96+4*(2*(2*cb+hf)+i)+2*h))
                o = 128 + 4 * n
                cvt_pair(k, o, A(2 * cb, i), A(2 * cb + 1, i))
                k(f"s_nop 1\nv_permlane16_swap_b32 v{o}, v{o+2}\nv_permlane16_swap_b32 v{o+1}, v{o+3}")
                k(f"buffer_store_dwordx4 {vr(o,4)}, v16, s[52:55], {'s49' if i else '0'} offen offset:{cb*128}")
        return
    if which == 3:
        for i in range(2): k(f"v_mov_b32 v{20+2*i}, 0\nv_mov_b32 v{21+2*i}, 0")
        for q in range(4): k(f"v_permlane16_swap_b32 v{R+4*q}, v{R+4*q+2}\nv_permlane16_swap_b32 v{R+4*q+1}, v{R+4*q+3}")
    for cb in range(2):
        for i in range(2):
            r = R + 4 * (cb * 2 + i)
            for hf in range(2):
                a = A(2 * cb + hf, i)
                for d in range(2):
                    k(f"v_lshlrev_b32 v18, 16, v{r+2*hf+d}\nv_and_b32 v19, 0xffff0000, v{r+2*hf+d}")
                    k(f"v_add_f32 v{a+2*d}, v{a+2*d}, v18\nv_add_f32 v{a+2*d+1}, v{a+2*d+1}, v19")
            o = 64 + 4 * (cb * 2 + i)
            cvt_pair(k, o, A(2 * cb, i), A(2 * cb + 1, i))
            if which == 3:
                k(f"buffer_store_dwordx4 {vr(o,4)}, v4, s[12:15], s{50+cb} offen offset:{i*1024}{SC}")
                for q in range(4): k(f"v_accvgpr_write_b32 a{184+4*(cb*2+i)+q}, v{o+q}")
                for d in range(4):
                    k(f"v_lshlrev_b32 v18, 16, v{o+d}\nv_and_b32 v19, 0xffff0000, v{o+d}")
                    k(f"v_add_f32 v{20+2*i}, v{20+2*i}, v18\nv_fmac_f32 v{21+2*i}, v18, v18")
                    k(f"v_add_f32 v{20+2*i}, v{20+2*i}, v19\nv_fmac_f32 v{21+2*i}, v19, v19")
            else:
                so = "s49" if i else "0"
                k(f"s_nop 1\nv_permlane16_swap_b32 v{o}, v{o+2}\nv_permlane16_swap_b32 v{o+1}, v{o+3}")
                k(f"buffer_store_dwordx4 {vr(o,4)}, v16, s[52:55], {so} offen offset:{cb*128}")
    if which == 3:
        for op in ("v_permlane16_swap_b32", "v_permlane32_swap_b32"):
            for r in range(4): k(f"v_mov_b32 v{24+r}, v{20+r}")
            k("s_nop 1")
            for r in range(4): k(f"{op} v{20+r}, v{24+r}")
            k("s_nop 1")
            for r in range(4): k(f"v_add_f32 v{20+r}, v{20+r}, v{24+r}")
        k(f"""
        v_lshlrev_b32 v17, 3, v3
        s_lshl_b32 s45, s40, 13
        s_lshl_b32 s46, s41, 10
        s_add_u32 s45, s45, s46
        s_lshl_b32 s46, s44, 9
        s_add_u32 s45, s45, s46
        s_lshl_b32 s46, s43, 8
        s_add_u32 s45, s45, s46
        s_mov_b64 exec, 0xffff
        buffer_store_dwordx2 v[20:21], v17, s[56:59], s45 offen{SC}
        buffer_store_dwordx2 v[22:23], v17, s[56:59], s45 offen offset:128{SC}
        s_mov_b64 exec, -1
        """)

def gen_k4(k, boundary):
    c = G(); c.name, c.st = 'p4', 8
    c.K, c.TM, c.BK, c.NS, c.SUB, c.MT, c.NT, c.WN = 1024, 256, 32, 4, 1, 4, 14, 1
    c.LA, c.vrd, c.frag_agpr = P('LA4', 3), 12, True
    c.wmode, c.LW, c.wstride = "gu", 4, F * 2
    c.slot, c.xm, c.tm = 30720, 2, 4
    c.acc_agpr, c.vacc, c.vfx, c.vfw = False, 32, 0, 32
    c.swap = lambda j: False
    c.span, c.cutg, c.pre_vm = P('SP4', 0.85), 0, 24
    XL = c.slot * c.NS
    def srds(k):
        k("s_cmp_ge_u32 s42, 2\ns_cselect_b32 s34, s74, s72\ns_cselect_b32 s35, s75, s73")
        k.srd(4, PWS, WS_H, S * D * 2)
        k.srd(8, 34, -BIAS, D * F * 2 + BIAS)
        k.srd(12, PWS, WS_ACT, S * F * 2)
        k.srd(52, PWS, WS_ST, S * 128)
        k.srd(56, PWS, WS_CS, 8 * 2 * F * 4)
    c.srds = srds
    def pre(k):
        k(f"""
        s_lshl_b32 s45, s40, 2
        s_add_u32 s45, s45, s42
        s_lshl_b32 s45, s45, 13
        s_add_u32 s47, s45, 4096
        v_lshlrev_b32 v16, 3, v1
        v_cmp_le_u32 vcc, 112, v0
        v_mov_b32 v17, {(F-112)*4}
        s_mul_i32 s46, s41, 448
        v_cndmask_b32 v17, 0, v17, vcc
        v_lshl_add_u32 v17, v0, 2, v17
        """)
        for j in range(16): k(f"buffer_load_dwordx2 {ar(144+2*j,2)}, v16, s[52:55], s{45 if j < 8 else 47} offen offset:{512*(j%8)}{SC}")
        for j in range(8):
            k(f"buffer_load_dword a{176+j}, v17, s[56:59], s46 offen{SC}\ns_add_u32 s46, s46, {2*F*4}")
    c.pre = pre; c.pre0 = lambda k: None
    e0 = ["v_accvgpr_read_b32 v5, a176"]
    for j in range(1, 8): e0 += [f"v_accvgpr_read_b32 v6, a{176+j}", "v_add_f32 v5, v5, v6"]
    e0 += ["v_lshlrev_b32 v6, 2, v0", f"v_add_u32 v6, {XL}, v6", "ds_write_b32 v6, v5"]
    e1 = ["v_accvgpr_read_b32 v18, a144", "v_accvgpr_read_b32 v19, a145"]
    for j in range(1, 16): e1 += [f"v_accvgpr_read_b32 v6, a{144+2*j}", f"v_accvgpr_read_b32 v7, a{145+2*j}", pk("v_pk_add_f32", 18, 18, 6)]
    e3 = f"""v_mul_f32 v18, 0xba800000, v18
    v_mul_f32 v19, 0x3a800000, v19
    v_fma_f32 v19, -v18, v18, v19
    v_max_f32 v19, 0, v19
    v_add_f32 v19, 0x3727c5ac, v19
    v_sqrt_f32 v19, v19
    v_lshlrev_b32 v5, 2, v3
    v_lshlrev_b32 v30, 4, v2
    v_add_u32 v30, {XL}, v30
    v_and_b32 v29, 31, v1
    v_lshlrev_b32 v29, 4, v29
    v_and_b32 v28, 32, v1
    v_lshl_add_u32 v29, v28, 5, v29""".split("\n")
    for i in range(4): e3 += [f"ds_bpermute_b32 v{8+i}, v5, v18 offset:{64*i}", f"ds_bpermute_b32 v{12+i}, v5, v19 offset:{64*i}"]
    gemm_main(k, c, boundary)
    A = lambda j, i: c.vacc + 4 * (j * c.MT + i)
    k.ext(e0 + e1 + e3)
    k(f"""
    s_lshl_b32 s45, s40, 2
    s_add_u32 s45, s45, s42
    s_mul_i32 s45, s45, {112*4096}
    s_mul_i32 s46, s41, 7
    s_waitcnt lgkmcnt(0)
    s_barrier
    """)
    k("ds_read_b128 v[20:23], v30\nds_read_b128 v[24:27], v30 offset:448")
    for i in range(4): k(f"v_rcp_f32 v{16+i}, v{12+i}")
    k("s_nop 0")
    for i in range(4): k(f"v_mul_f32 v{16+i}, 0xbfb8aa3b, v{16+i}")
    for j in range(7):
        k(f"""
        s_add_u32 s47, s46, {j}
        s_lshr_b32 s48, s47, 1
        s_lshl_b32 s48, s48, 12
        s_and_b32 s47, s47, 1
        s_lshl_b32 s47, s47, 9
        s_add_u32 s48, s48, s47
        s_add_u32 s48, s48, s45
        s_waitcnt lgkmcnt(0)
        """)
        for i in range(4):
            for h in range(2):
                k(pk("v_pk_fma_f32", A(j,i)+2*h, 20+2*h, 8+i, A(j,i)+2*h, "b"))
                k(pk("v_pk_fma_f32", A(j+7,i)+2*h, 24+2*h, 8+i, A(j+7,i)+2*h, "b"))
        if j < 6: k(f"ds_read_b128 v[20:23], v30 offset:{64*(j+1)}\nds_read_b128 v[24:27], v30 offset:{448+64*(j+1)}")
        for i in range(4):
            for h in range(2): k(pk("v_pk_mul_f32", A(j,i)+2*h, A(j,i)+2*h, 16+i, None, "b"))
        for i in range(4):
            for r in range(4): k(f"v_exp_f32 v{A(j,i)+r}, v{A(j,i)+r}")
        for i in range(4):
            for h in range(2): k(pk("v_pk_fma_f32", A(j,i)+2*h, A(j,i)+2*h, 12+i, 12+i, "bc"))
        for i in range(4):
            for r in range(4): k(f"v_rcp_f32 v{A(j,i)+r}, v{A(j,i)+r}")
        for i in range(4):
            for h in range(2): k(pk("v_pk_mul_f32", A(j,i)+2*h, A(j,i)+2*h, A(j+7,i)+2*h))
        for ip in range(2):
            a, b = A(j, 2 * ip), A(j, 2 * ip + 1)
            k(f"v_cvt_pk_bf16_f32 v{a}, v{a}, v{a+1}\nv_cvt_pk_bf16_f32 v{a+1}, v{a+2}, v{a+3}")
            k(f"v_cvt_pk_bf16_f32 v{a+2}, v{b}, v{b+1}\nv_cvt_pk_bf16_f32 v{a+3}, v{b+2}, v{b+3}")
        for ip in range(2):
            a = A(j, 2 * ip)
            if ip == 1: k("s_nop 0")
            k(f"v_permlane32_swap_b32 v{a}, v{a+2}\nv_permlane32_swap_b32 v{a+1}, v{a+3}")
            k(f"buffer_store_dwordx4 {vr(a,4)}, v29, s[12:15], s48 offen offset:{ip*2048}{SC}")
```
